```python
import torch

def _softmax(x, axis=-1):
    return torch.softmax(x, dim=axis)

def _gelu(x):
    return torch.nn.functional.gelu(x, approximate='tanh')

def _silu(x):
    return torch.nn.functional.silu(x)

def _sigmoid(x):
    return torch.sigmoid(x)

def _layernorm(x, axis=-1, eps=1e-05):
    m = x.mean(dim=axis, keepdim=True)
    v = x.var(dim=axis, keepdim=True, unbiased=False)
    return (x - m) / torch.sqrt(v + eps)

def _scatter_add(tgt, idx, src, axis=0):
    return tgt.clone().index_add_(axis, idx, src)

def _segment_sum(src, seg, n):
    out = torch.zeros((n,) + src.shape[1:], dtype=src.dtype)
    return out.index_add_(0, seg, src)

def _pad(x, pw):
    flat = tuple((v for pair in reversed(pw) for v in pair))
    return torch.nn.functional.pad(x, flat)
kernel_name = 'adaLN_cond__ssm_conv_h3__glu_gated_geglu__prompt'

def setup_inputs():

    _w = lambda a: (lambda t: t.to(torch.bfloat16) if t.is_floating_point() else t)(torch.as_tensor(a))

    def _A_setup():
        B, S, D = (1, 2048, 512)
        ks = 4
        return {'q': _w((lambda *s: torch.randn(*s, dtype=torch.bfloat16) * 0.05)(B, S, D)), 'k': _w((lambda *s: torch.randn(*s, dtype=torch.bfloat16) * 1.6)(B, S, D)), 'v': _w((lambda *s: torch.randn(*s, dtype=torch.bfloat16) * 1.6)(B, S, D)), 'shift_k': _w((lambda *s: torch.randn(*s, dtype=torch.bfloat16) * 1.6)(D, ks) * 0.5), 'ssm_k': _w((lambda *s: torch.randn(*s, dtype=torch.bfloat16) * 1.6)(D, S) * (1.0 / S ** 0.5)), 'ssm_D': _w((lambda *s: torch.randn(*s, dtype=torch.bfloat16) * 1.6)(D))}
    _A_in = _A_setup()

    def _B_setup():
        B, S, Dm, Df = (1, 2048, 512, 1792)
        return {'x': _w((lambda *s: torch.randn(*s, dtype=torch.bfloat16) * 0.05)(B, S, Dm)), 'w_gate': _w((lambda *s: torch.randn(*s, dtype=torch.bfloat16) * 3.2)(Dm, Df) * Dm ** (-0.5)), 'w_up': _w((lambda *s: torch.randn(*s, dtype=torch.bfloat16) * 3.2)(Dm, Df) * Dm ** (-0.5)), 'w_down': _w((lambda *s: torch.randn(*s, dtype=torch.bfloat16) * 3.2)(Df, Dm) * Df ** (-0.5))}
    _B_in = _B_setup()
    return {'A_q': _A_in['q'], 'A_k': _A_in['k'], 'A_v': _A_in['v'], 'A_shift_k': _A_in['shift_k'], 'A_ssm_k': _A_in['ssm_k'], 'A_ssm_D': _A_in['ssm_D'], 'B_x': _B_in['x'], 'B_w_gate': _B_in['w_gate'], 'B_w_up': _B_in['w_up'], 'B_w_down': _B_in['w_down'], 'c': _w((lambda *s: torch.randn(*s, dtype=torch.bfloat16) * 0.1)(1, 512) * 8.0), 'w_mod': _w((lambda *s: torch.randn(*s, dtype=torch.bfloat16) * 0.1)(512, 6 * 512) * 512 ** (-0.5) * 8.0)}

def reference(A_q, A_k, A_v, A_shift_k, A_ssm_k, A_ssm_D, B_x, B_w_gate, B_w_up, B_w_down, c, w_mod):

    def _A_ref(q, k, v, shift_k, ssm_k, ssm_D):
        B, S, D = q.shape
        ks = shift_k.shape[-1]
        k_pad = _pad(k, ((0, 0), (ks - 1, 0), (0, 0)))
        k_shift = torch.zeros_like(k)
        for t in range(ks):
            k_shift = k_shift + k_pad[:, t:t + S, :] * shift_k[:, ks - 1 - t][None, None, :]
        kv = k_shift * v
        L = 2 * S
        kv_pad = _pad(kv, ((0, 0), (0, S), (0, 0)))
        kf_pad = _pad(ssm_k, ((0, 0), (0, S)))
        kv_f = (lambda x, axes=(-2, -1): torch.fft.rfft2(x.float(), dim=axes))(kv_pad[:, None, :, :], axes=(1, 2))
        kf_f = (lambda x, axes=(-2, -1): torch.fft.rfft2(x.float(), dim=axes))(kf_pad[:, None, :], axes=(1, 2))
        kf_f = (lambda x, *d: x.permute(*d))(kf_f, 1, 2, 0)
        y_f = kv_f * kf_f[None, :, :, :]
        y = (lambda x, s, axes=(-2, -1): torch.fft.irfft2(x, s=s, dim=axes).to(torch.bfloat16))(y_f, (1, L), axes=(1, 2))[:, 0, :S, :]
        y = y + kv * ssm_D[None, None, :]
        return q * y

    def _B_ref(x, w_gate, w_up, w_down):
        g = torch.einsum('bsd,df->bsf', x, w_gate)
        u = torch.einsum('bsd,df->bsf', x, w_up)
        h = _gelu(g) * u
        return torch.einsum('bsf,fd->bsd', h, w_down)
    x = A_q
    mod = (_silu(c) @ w_mod).reshape(c.shape[0], 6, 1, -1)
    sa, ca, ga, sb, cb, gb = (mod[:, 0].clone(), mod[:, 1].clone(), mod[:, 2].clone(), mod[:, 3].clone(), mod[:, 4].clone(), mod[:, 5].clone())
    h = _layernorm(x, axis=-1) * (1 + ca) + sa
    x = x + ga * _A_ref(h, A_k, A_v, A_shift_k, A_ssm_k, A_ssm_D)
    h = _layernorm(x, axis=-1) * (1 + cb) + sb
    x = x + gb * _B_ref(h, B_w_gate, B_w_up, B_w_down)
    return x
```

```python
import re

TRANS = ("v_exp_f32", "v_log_f32", "v_rcp_f32", "v_rsq_f32", "v_sqrt_f32", "v_sin_f32", "v_cos_f32")


def regs_of(tok):
    tok = tok.strip()
    tok = re.sub(r"^-|^\|", "", tok)
    tok = tok.replace("|", "")
    m = re.fullmatch(r"abs\((.*)\)", tok)
    if m:
        tok = m.group(1)
    m = re.fullmatch(r"([vas])(\d+)", tok)
    if m:
        return [(m.group(1), int(m.group(2)))]
    m = re.fullmatch(r"([vas])\[(\d+):(\d+)\]", tok)
    if m:
        return [(m.group(1), i) for i in range(int(m.group(2)), int(m.group(3)) + 1)]
    if tok == "vcc":
        return [("s", "vcc_lo"), ("s", "vcc_hi")]
    if tok in ("vcc_lo", "vcc_hi", "m0"):
        return [("s", tok)]
    if tok == "exec":
        return [("s", "exec_lo"), ("s", "exec_hi")]
    if tok in ("exec_lo", "exec_hi"):
        return [("s", tok)]
    return []


class Ins:
    def __init__(self, text):
        self.text = text
        body = text.split(";")[0].strip()
        self.label = body.endswith(":")
        self.directive = body.startswith(".")
        self.op = body.split()[0] if body and not self.label else ""
        rest = body[len(self.op):].strip() if self.op else ""
        parts = [p.strip() for p in re.split(r",(?![^\[]*\])", rest)] if rest else []
        if parts:
            last = parts[-1].split()
            self.mods = " ".join(last[1:])
            parts[-1] = last[0] if last else ""
        else:
            self.mods = ""
        self.args = parts
        op = self.op
        self.mfma = op.startswith("v_mfma")
        self.valu = op.startswith("v_") and not self.mfma
        self.salu = op.startswith("s_")
        self.ds = op.startswith("ds_")
        self.vmem = op.startswith(("buffer_", "global_"))
        self.dpp = "_dpp" in op or "quad_perm" in self.mods or "row_" in self.mods
        self.trans = op.replace("_e32", "").replace("_e64", "") in TRANS
        self.lds_dma = self.vmem and (self.mods.endswith("lds") or " lds" in " " + self.mods or "load_lds" in op)
        w, r = [], []
        A = [regs_of(p) for p in parts]
        if self.mfma:
            w = A[0]
            r = A[1] + A[2] + A[3]
            self.srcc = A[3]
            self.srcab = A[1] + A[2]
            self.passes = 8 if "32x32" in op else 4
        elif self.valu:
            w = list(A[0])
            r = [x for a in A[1:] for x in a]
            if op.startswith(("v_add_co", "v_sub_co", "v_addc_co", "v_subb_co")):
                w += A[1]
                r = [x for a in A[2:] for x in a]
            if op.startswith(("v_fmac", "v_dot2c", "v_writelane", "v_pk_fmac")) or self.dpp or "sdwa" in op:
                r += A[0]
            if op.startswith("v_permlane"):
                w = A[0] + A[1]
                r = A[0] + A[1]
            if op.startswith("v_cndmask") and len(parts) == 3:
                r += regs_of("vcc")
        elif self.ds:
            if op.startswith(("ds_read", "ds_bpermute", "ds_permute", "ds_swizzle")):
                w = A[0]
                r = [x for a in A[1:] for x in a]
            else:
                r = [x for a in A for x in a]
        elif self.vmem:
            if self.lds_dma:
                r = [x for a in A for x in a] + regs_of("m0")
            elif "load" in op:
                w = A[0]
                r = [x for a in A[1:] for x in a]
                if "d16" in op:
                    r += A[0]
            elif op in ("buffer_wbl2", "buffer_inv"):
                pass
            else:
                r = [x for a in A for x in a]
                self.stdata = A[0] if op.startswith("buffer_") else A[1]
                if "atomic" in op and "sc0" in self.mods:
                    w = A[0]
        elif self.salu:
            if op.startswith(("s_cmp", "s_cbranch", "s_branch", "s_waitcnt", "s_nop", "s_barrier", "s_sleep", "s_setprio", "s_endpgm", "s_bitcmp")):
                r = [x for a in A for x in a]
            else:
                w = A[0] if A else []
                r = [x for a in A[1:] for x in a]
                if "saveexec" in op:
                    w = w + regs_of("exec")
        self.w, self.r = set(w), set(r)

    def states(self):
        if self.label or self.directive or not self.op:
            return 0
        if self.op == "s_nop":
            return int(self.args[0], 0) + 1
        return 1


def need(p, c):
    n = 0
    vw = {x for x in p.w if x[0] in "va"}
    sw = {x for x in p.w if x[0] == "s"}
    if p.valu:
        if c.mfma and vw & c.r:
            n = max(n, 2)
        if c.valu and c.dpp and vw & c.r:
            n = max(n, 2)
        if c.op.startswith("v_permlane") and vw & c.r:
            n = max(n, 2)
        if c.op.startswith(("v_readlane", "v_readfirstlane")) and vw & c.r:
            n = max(n, 1)
        if p.trans and c.valu and vw & c.r:
            n = max(n, 1)
        if ("sdwa" in p.op or "op_sel" in p.mods) and c.valu and vw & (c.r | c.w):
            n = max(n, 1)
        if sw:
            if c.vmem and sw & c.r:
                n = max(n, 5)
            if c.valu and sw & c.r:
                n = max(n, 4 if c.op.startswith(("v_readlane", "v_writelane")) else 2)
            if c.salu and sw & c.r:
                n = max(n, 1)
            if c.op.startswith("s_cbranch_vcc") and any(x[1] in ("vcc_lo", "vcc_hi") for x in sw):
                n = max(n, 5)
    if p.salu and ("s", "m0") in p.w and c.vmem and c.lds_dma:
        n = max(n, 1)
    if p.salu and any(x[1] in ("exec_lo", "exec_hi") for x in sw) and c.valu and c.dpp:
        n = max(n, 1)
    if p.mfma:
        big = p.passes == 8
        if c.mfma:
            if p.w & set(c.srcab):
                n = max(n, 12 if big else 8)
            cc = set(c.srcc)
            if p.w & cc and not (cc == p.w and c.passes == p.passes):
                n = max(n, 10 if big else 6)
            if p.w & c.w and not (cc == p.w and c.passes == p.passes):
                n = max(n, 10 if big else 6)
        else:
            if p.w & (c.r | c.w):
                n = max(n, 12 if big else 8)
            if c.valu and set(p.srcc) & c.w:
                n = max(n, 7 if big else 3)
    if p.vmem and hasattr(p, "stdata") and len(p.stdata) >= 3 and set(p.stdata) & c.w:
        n = max(n, 2)
    return n


def fix_hazards(lines):
    ins = [Ins(l) for l in lines]
    changed = True
    total = 0
    while changed:
        changed = False
        labels = {i.text.split(";")[0].strip()[:-1]: k for k, i in enumerate(ins) if i.label}
        srcs = {}
        for k, i in enumerate(ins):
            if i.op.startswith(("s_cbranch", "s_branch")):
                srcs.setdefault(labels[i.args[0]], []).append(k)
        for k, c in enumerate(ins):
            if not c.op or c.directive or c.op == "s_nop":
                continue
            short = 0
            stack = [(k - 1, 0)]
            seen = set()
            while stack:
                j, dist = stack.pop()
                while j >= 0 and dist < 12:
                    if (j, dist) in seen:
                        break
                    seen.add((j, dist))
                    p = ins[j]
                    if p.label:
                        for s in srcs.get(j, []):
                            stack.append((s, dist))
                        if j > 0 and ins[j - 1].op in ("s_branch", "s_endpgm"):
                            break
                    elif p.op:
                        short = max(short, need(p, c) - dist)
                        dist += p.states()
                    j -= 1
            if short > 0:
                ins.insert(k, Ins(f"    s_nop {short - 1}"))
                total += 1
                changed = True
                break
    return [i.text for i in ins], total


class Asm:
    def __init__(self):
        self.lines = []
        self.vm = []
        self.lg = []
        self.uid = 0

    def __call__(self, text, tag=None):
        for line in text.strip("\n").split("\n"):
            s = line.strip()
            if not s:
                continue
            self.lines.append(s if s.endswith(":") else "    " + s)
            op = s.split()[0]
            if op.startswith(("buffer_", "global_")):
                self.vm.append(tag)
            elif op.startswith("ds_"):
                self.lg.append(tag)
            elif op == "s_waitcnt":
                m = re.search(r"vmcnt\((\d+)\)", s)
                if m:
                    n = int(m.group(1))
                    self.vm = self.vm[len(self.vm) - n:] if n < len(self.vm) else self.vm
                    if n == 0:
                        self.vm = []
                m = re.search(r"lgkmcnt\((\d+)\)", s)
                if m:
                    n = int(m.group(1))
                    self.lg = self.lg[len(self.lg) - n:] if n < len(self.lg) else self.lg
                    if n == 0:
                        self.lg = []

    def _after(self, q, tags):
        tags = tags if isinstance(tags, (list, set)) else [tags]
        last = max((i for i, t in enumerate(q) if t in tags), default=None)
        return None if last is None else len(q) - 1 - last

    def wait_vm(self, tags):
        n = self._after(self.vm, tags)
        if n is not None:
            self(f"s_waitcnt vmcnt({min(n, 63)})")

    def wait_lg(self, tags):
        n = self._after(self.lg, tags)
        if n is not None:
            self(f"s_waitcnt lgkmcnt({min(n, 15)})")

    def label(self, base):
        self.uid += 1
        return f"L_{base}_{self.uid}"

    def state(self):
        return list(self.vm), list(self.lg)

    def restore(self, st):
        self.vm, self.lg = list(st[0]), list(st[1])


def vr(base, n=1, f="v"):
    return f"{f}{base}" if n == 1 else f"{f}[{base}:{base + n - 1}]"
```

```python
import sys, math
from asmlib import *

NAME = "adaLN_cond__ssm_conv_h3__glu_gated_geglu__prompt"
DIAG = "--diag" in sys.argv
OUT = [x for x in sys.argv[1:] if not x.startswith("--")]
OUT = OUT[0] if OUT else f"cdna_kernels/{NAME}.s"

WS_E, WS_F0, WS_FM, WS_FF, WS_F1, WS_F15, WS_F2 = 0, 0x10000, 0x18000, 0x20000, 0x28000, 0x30000, 0x38000
WS_MODP, WS_MODF, WS_PROF = 0x40000, 0x50000, 0x60000
WS_KVB, WS_YP, WS_H2, WS_X1, WS_HH = 0x100000, 0x300000, 0x500000, 0x700000, 0x900000
WS_SIZE = 0x1000000

SRD = dict(Q=36, K=40, V=44, SH=48, SK=52, WG=56, WU=60, WD=64, WM=68, OUT=72, WS=76, C=80)
PTR = dict(Q=4, K=6, V=8, SH=10, SK=12, D=14, WG=18, WU=20, WD=22, C=24, WM=26, OUT=28, WS=32)
SIZE = dict(Q=1 << 21, K=1 << 21, V=1 << 21, SH=4096, SK=1 << 21, WG=1835008, WU=1835008, WD=1835008,
            WM=3145728, OUT=1 << 21, WS=WS_SIZE, C=1024)
sWAVE, sXCD, sJ, sWL, sN, sD = 84, 85, 86, 87, 88, 89
sT0, sT1, sT2, sT3, sCNT = 90, 91, 92, 93, 94
sMB, sFB, sSB, sDB = 95, 96, 97, 98
sSTAMP = 100
srd = lambda n: f"s[{SRD[n]}:{SRD[n] + 3}]"

KC_STRIDE = 4160
L_KC = 0
L_U = 66560
U_STRIDE = 4672
L_MISC = 76032
L_YT = 78336
LDS_BYTES = 163840

vTID, vLANE, vPROF = 0, 1, 127
vQ, vG, vC2, vS2 = 88, 96, 104, 112

a = Asm()
nstamp = [0]
stamp_names = []


def stamp(name):
    if not DIAG:
        return
    a(f"s_memrealtime s[{sSTAMP}:{sSTAMP + 1}]")
    a("s_waitcnt lgkmcnt(0)")
    a(f"v_writelane_b32 v{vPROF}, s{sSTAMP}, {nstamp[0]}")
    stamp_names.append(name)
    nstamp[0] += 1


def make_srd(n):
    b = SRD[n]
    a(f"s_mov_b32 s{b}, s{PTR[n]}")
    a(f"s_mov_b32 s{b + 1}, s{PTR[n] + 1}")
    a(f"s_mov_b32 s{b + 2}, {hex(SIZE[n])}")
    a(f"s_mov_b32 s{b + 3}, 0x20000")


def signal(base, idx_sgpr):
    a(f"s_lshl_b32 s{sT0}, s{idx_sgpr}, 7")
    a(f"s_add_u32 s{sT0}, s{sT0}, {hex(base)}")
    a(f"v_mov_b32 v2, s{sN}")
    a("v_mov_b32 v3, 0")
    a("s_mov_b64 exec, 1")
    a(f"buffer_store_dword v2, v3, {srd('WS')}, s{sT0} offen sc1")
    a("s_mov_b64 exec, -1")


def poll(vaddr, soff, delay=0):
    lp, done = a.label("poll"), a.label("polled")
    if delay:
        a(f"s_sleep {delay}")
    a(f"s_mov_b32 s{sCNT}, 0x8000")
    a(f"{lp}:")
    a(f"buffer_load_dword v2, v{vaddr}, {srd('WS')}, {soff} offen sc1")
    a("s_waitcnt vmcnt(0)")
    a(f"v_cmp_ne_u32 vcc, s{sN}, v2")
    a(f"s_cbranch_vccz {done}")
    a(f"s_sub_u32 s{sCNT}, s{sCNT}, 1")
    a(f"s_cmp_lg_u32 s{sCNT}, 0")
    a(f"s_cbranch_scc1 {lp}")
    a(f"{done}:")


def wave_sum(regs, tmps):
    for m in ("quad_perm:[1,0,3,2]", "quad_perm:[2,3,0,1]", "row_half_mirror", "row_mirror"):
        for r in regs:
            a(f"v_add_f32_dpp v{r}, v{r}, v{r} {m} row_mask:0xf bank_mask:0xf")
    for op in ("v_permlane16_swap_b32", "v_permlane32_swap_b32"):
        for r, t in zip(regs, tmps):
            a(f"v_mov_b32 v{t}, v{r}")
        for r, t in zip(regs, tmps):
            a(f"{op} v{r}, v{t}")
        for r, t in zip(regs, tmps):
            a(f"v_add_f32 v{r}, v{r}, v{t}")


def unpack(dst, src, n):
    for i in range(n):
        a(f"v_and_b32 v{dst + 2 * i + 1}, 0xffff0000, v{src + i}")
        a(f"v_lshlrev_b32 v{dst + 2 * i}, 16, v{src + i}")


def only_wave(cmp, val, name):
    skip = a.label(name)
    a(f"s_cmp_{cmp}_u32 s{sWAVE}, {val}")
    a(f"s_cbranch_scc0 {skip}")
    return skip


a("s_cmp_ge_u32 s2, 256")
a("s_cbranch_scc1 L_end")
a("s_load_dwordx16 s[4:19], s[0:1], 0")
a("s_load_dwordx8 s[20:27], s[0:1], 64")
a("s_load_dwordx4 s[28:31], s[0:1], 96")
a("s_load_dwordx2 s[32:33], s[0:1], 112")
if DIAG:
    a(f"v_mov_b32 v{vPROF}, 0")
    a(f"s_memrealtime s[{sSTAMP}:{sSTAMP + 1}]")
a(f"v_and_b32 v{vLANE}, 63, v0")
a("v_lshrrev_b32 v2, 6, v0")
a(f"v_readfirstlane_b32 s{sWAVE}, v2")
a(f"s_and_b32 s{sXCD}, s2, 7")
a(f"s_lshr_b32 s{sJ}, s2, 3")
a(f"s_lshl_b32 s{sWL}, s{sXCD}, 5")
a(f"s_add_u32 s{sWL}, s{sWL}, s{sJ}")
for r in list(range(16, 35)) + [60, 61]:
    a(f"v_mov_b32 v{r}, 0")
a(f"s_lshl_b32 s{sT0}, s{sJ}, 3")
a(f"s_add_u32 s{sT0}, s{sT0}, s{sWAVE}")
a(f"s_lshl_b32 s{sT1}, s{sT0}, 13")
a(f"s_lshl_b32 s{sT2}, s{sXCD}, 7")
a(f"s_add_u32 s{sT1}, s{sT1}, s{sT2}")
a(f"v_lshl_add_u32 v4, v{vLANE}, 1, s{sT1}")
a("v_subrev_u32 v5, 3072, v4")
a("v_add_u32 v6, 4096, v4")
a(f"s_lshl_b32 s{sT2}, s{sXCD}, 9")
a(f"v_lshl_add_u32 v7, v{vLANE}, 3, s{sT2}")
a(f"s_lshl_b32 s{sT0}, s{sT0}, 10")
a(f"s_lshl_b32 s{sT2}, s{sXCD}, 18")
a(f"s_add_u32 s{sT0}, s{sT0}, s{sT2}")
a(f"v_lshl_add_u32 v8, v{vLANE}, 4, s{sT0}")
a(f"s_lshl_b32 s{sT0}, s{sWL}, 13")
a(f"v_lshl_add_u32 v9, v0, 4, s{sT0}")
a("v_subrev_u32 v10, 16, v9")
a("v_and_b32 v11, 255, v0")
a("v_cmp_eq_u32 vcc, 0, v11")
a("v_mov_b32 v12, 0x80000000")
a("v_cndmask_b32 v10, v10, v12, vcc")
a(f"s_lshl_b32 s{sT0}, s{sWL}, 3")
a(f"s_add_u32 s{sT0}, s{sT0}, s{sWAVE}")
a(f"s_lshl_b32 s{sT0}, s{sT0}, 10")
a(f"v_lshl_add_u32 v13, v{vLANE}, 4, s{sT0}")
a("s_waitcnt lgkmcnt(0)")
if DIAG:
    a(f"v_writelane_b32 v{vPROF}, s{sSTAMP}, 0")
    stamp_names.append("start")
    nstamp[0] = 1
make_srd("K")
make_srd("V")
make_srd("SH")
a(f"s_load_dword s{sN}, s[32:33], 0")
a(f"s_lshl_b32 s{sT0}, s{sWL}, 2")
a(f"s_load_dword s{sD}, s[14:15], s{sT0}")
stamp("kernarg")
NT = "nt"
a(f"buffer_load_dwordx2 v[36:37], v7, {srd('SH')}, 0 offen", "kv")
for i in range(11):
    va, off = (5, i * 1024) if i < 3 else ((4, (i - 3) * 1024) if i < 7 else (6, (i - 7) * 1024))
    a(f"buffer_load_short_d16_hi v{16 + i}, v{va}, {srd('K')}, 0 offen offset:{off}", "kv")
for i in range(8):
    va, off = (4, i * 1024) if i < 4 else (6, (i - 4) * 1024)
    a(f"buffer_load_short_d16_hi v{27 + i}, v{va}, {srd('V')}, 0 offen offset:{off} {NT}", "kv")
for n in ("SK", "Q", "WM", "C", "WS", "WG", "WU", "WD", "OUT"):
    make_srd(n)
a(f"buffer_load_dwordx4 v[44:47], v9, {srd('SK')}, 0 offen", "K")
a(f"buffer_load_dwordx4 v[40:43], v10, {srd('SK')}, 0 offen", "K")
a(f"buffer_load_dwordx4 v[48:51], v13, {srd('Q')}, 0 offen {NT}", "q")
a(f"s_lshr_b32 s{sT0}, s{sJ}, 2")
a(f"s_lshl_b32 s{sT0}, s{sT0}, 10")
a(f"s_lshl_b32 s{sT1}, s{sXCD}, 7")
a(f"s_add_u32 s{sT0}, s{sT0}, s{sT1}")
a(f"s_and_b32 s{sT1}, s{sJ}, 3")
a(f"s_lshl_b32 s{sT1}, s{sT1}, 7")
a("v_lshrrev_b32 v14, 3, v0")
a(f"v_add_u32 v14, s{sT1}, v14")
a("v_mul_u32_u24 v15, 6144, v14")
a("v_and_b32 v11, 7, v0")
a("v_lshl_add_u32 v15, v11, 4, v15")
a(f"s_cmp_lt_u32 s{sJ}, 24")
a(f"s_cselect_b32 s{sT0}, s{sT0}, 0x40000000")
a(f"s_add_u32 s{sT1}, s{sT0}, {64 * 6144}")
a("v_lshlrev_b32 v14, 1, v14")
a(f"buffer_load_dwordx4 v[52:55], v15, {srd('WM')}, s{sT0} offen {NT}", "wm")
a(f"buffer_load_dwordx4 v[56:59], v15, {srd('WM')}, s{sT1} offen {NT}", "wm")
a(f"buffer_load_short_d16_hi v60, v14, {srd('C')}, 0 offen", "wm")
a(f"buffer_load_short_d16_hi v61, v14, {srd('C')}, 0 offen offset:128", "wm")
for r in range(64, 68):
    a(f"v_mov_b32 v{r}, 0")
sk = only_wave("eq", 0, "zp0")
a(f"v_mul_u32_u24 v2, {KC_STRIDE}, v{vLANE}")
a("s_mov_b64 exec, 0xffff")
a(f"ds_write_b128 v2, v[64:67] offset:{L_KC}")
a("s_mov_b64 exec, -1")
a(f"v_and_b32 v2, 31, v{vLANE}")
a("v_lshlrev_b32 v2, 4, v2")
a(f"v_lshrrev_b32 v3, 5, v{vLANE}")
a(f"v_mul_u32_u24 v3, {U_STRIDE}, v3")
a(f"v_add_u32 v3, {L_U}, v3")
a("v_add_u32 v2, v2, v3")
a("ds_write_b128 v2, v[64:67]")
a(f"{sk}:")
a("s_waitcnt lgkmcnt(0)")
a(f"s_mul_i32 s{sN}, s{sN}, 1664525")
a(f"s_add_u32 s{sN}, s{sN}, 1013904223")

a.wait_vm("kv")
stamp("kv loaded")
unpack(64, 36, 2)
for r in range(8):
    a(f"v_mul_f32 v{68 + r}, v{16 + r + 3}, v64")
for j in range(1, 4):
    for r in range(8):
        a(f"v_fmac_f32 v{68 + r}, v{16 + r + 3 - j}, v{64 + j}")
for r in range(8):
    a(f"v_mul_f32 v{68 + r}, v{68 + r}, v{27 + r}")
for i in range(4):
    a(f"v_cvt_pk_bf16_f32 v{76 + i}, v{68 + 7 - 2 * i}, v{68 + 6 - 2 * i}")
a(f"s_mov_b32 s{sT0}, {hex(WS_KVB)}")
a(f"buffer_store_dwordx4 v[76:79], v8, {srd('WS')}, s{sT0} offen sc1", "kvst")

a.wait_vm("K")
for i in range(6):
    a(f"v_alignbit_b32 v{16 + i}, v{41 + i}, v{40 + i}, 16")
for i in range(6):
    a(f"v_alignbit_b32 v{22 + i}, v{42 + i}, v{41 + i}, 16")
for i in range(6):
    a(f"v_mov_b32 v{28 + i}, v{41 + i}")
a("v_and_b32 v2, 255, v0")
a("v_lshlrev_b32 v2, 4, v2")
a("v_lshrrev_b32 v3, 8, v0")
a(f"v_mul_u32_u24 v3, {8 * KC_STRIDE}, v3")
a("v_add_u32 v2, v2, v3")
win = {1: 16, 2: 28, 3: 22, 4: 42, 5: 18, 6: 30, 7: 24, 8: 44}
for sh in range(1, 9):
    b = win[sh]
    a(f"ds_write_b128 v2, v[{b}:{b + 3}] offset:{L_KC + (sh - 1) * KC_STRIDE + 16}")
a.wait_vm("kvst")
stamp("kv drained")
a("s_barrier")
sk = only_wave("eq", 0, "sig0")
signal(WS_F0, sWL)
a(f"{sk}:")
a.vm = []

LOG2E = 1.4426950408889634
for i in (60, 61):
    a(f"v_mul_f32 v{i + 2}, {-LOG2E}, v{i}")
for i in (60, 61):
    a(f"v_exp_f32 v{i + 2}, v{i + 2}")
for i in (60, 61):
    a(f"v_add_f32 v{i + 2}, 1.0, v{i + 2}")
for i in (60, 61):
    a(f"v_rcp_f32 v{i + 2}, v{i + 2}")
for i in (60, 61):
    a(f"v_mul_f32 v{i}, v{i}, v{i + 2}")
a("v_cvt_pk_bf16_f32 v62, v60, v61")
unpack(60, 62, 1)
unpack(64, 52, 4)
unpack(72, 56, 4)
for e in range(8):
    a(f"v_mul_f32 v{64 + e}, v{64 + e}, v60")
for e in range(8):
    a(f"v_fmac_f32 v{64 + e}, v{72 + e}, v61")
for e in range(4):
    a(f"v_permlane32_swap_b32 v{64 + e}, v{68 + e}")
for e in range(4):
    a(f"v_add_f32 v{64 + e}, v{64 + e}, v{68 + e}")
for e in range(2):
    a(f"v_permlane16_swap_b32 v{64 + e}, v{66 + e}")
for e in range(2):
    a(f"v_add_f32 v{64 + e}, v{64 + e}, v{66 + e}")
for e in range(2):
    a(f"v_add_f32_dpp v{64 + e}, v{64 + e}, v{64 + e} row_ror:8 row_mask:0xf bank_mask:0xf")
a(f"v_and_b32 v2, 7, v{vLANE}")
a("v_lshlrev_b32 v2, 5, v2")
a(f"v_lshrrev_b32 v3, 4, v{vLANE}")
a("v_lshl_add_u32 v2, v3, 3, v2")
a(f"s_lshl_b32 s{sT0}, s{sWAVE}, 8")
a(f"s_add_u32 s{sT0}, s{sT0}, {L_MISC}")
a(f"v_add_u32 v2, s{sT0}, v2")
a("ds_write_b64 v2, v[64:65]")

unpack(vQ, 48, 4)
a(f"v_add_f32 v64, v{vQ}, v{vQ + 1}")
for e in range(2, 8):
    a(f"v_add_f32 v64, v64, v{vQ + e}")
wave_sum([64], [65])
a(f"v_mul_f32 v64, {-1.0 / 512}, v64")
for e in range(8):
    a(f"v_add_f32 v{vG + e}, v{vQ + e}, v64")
a(f"v_mul_f32 v64, v{vG}, v{vG}")
for e in range(1, 8):
    a(f"v_fmac_f32 v64, v{vG + e}, v{vG + e}")
wave_sum([64], [65])
a("v_mov_b32 v65, 0x3727c5ac")
a(f"v_fmac_f32 v65, {1.0 / 512}, v64")
a("v_rsq_f32 v65, v65")
for e in range(8):
    a(f"v_mul_f32 v{vG + e}, v{vG + e}, v65")

a("s_waitcnt lgkmcnt(0)")
a("s_barrier")
sk = only_wave("eq", 1, "modp")
a(f"s_cmp_lt_u32 s{sJ}, 24")
a(f"s_cbranch_scc0 {sk}")
a(f"v_lshlrev_b32 v4, 2, v{vLANE}")
a(f"v_add_u32 v2, {L_MISC}, v4")
for w in range(8):
    a(f"ds_read_b32 v{64 + w}, v2 offset:{w * 256}")
a(f"s_and_b32 s{sT0}, s{sJ}, 3")
a(f"s_mul_i32 s{sT0}, s{sT0}, 12288")
a(f"s_lshr_b32 s{sT1}, s{sJ}, 2")
a(f"s_lshl_b32 s{sT1}, s{sT1}, 11")
a(f"s_add_u32 s{sT0}, s{sT0}, s{sT1}")
a(f"s_lshl_b32 s{sT1}, s{sXCD}, 8")
a(f"s_add_u32 s{sT0}, s{sT0}, s{sT1}")
a(f"s_add_u32 s{sT0}, s{sT0}, {hex(WS_MODP)}")
a("s_waitcnt lgkmcnt(0)")
for w in range(1, 8):
    a(f"v_add_f32 v64, v64, v{64 + w}")
a(f"buffer_store_dword v64, v4, {srd('WS')}, s{sT0} offen sc1")
a("s_waitcnt vmcnt(0)")
signal(WS_FM, sWL)
a(f"{sk}:")
a.vm, a.lg = [], []

sk = only_wave("eq", 0, "h0")
a(f"v_and_b32 v4, 31, v{vLANE}")
a("v_lshlrev_b32 v4, 7, v4")
a(f"s_lshl_b32 s{sT1}, s{sXCD}, 12")
a(f"s_add_u32 s{sT1}, s{sT1}, {hex(WS_F0)}")
poll(4, f"s{sT1}")
a(f"{sk}:")
a("s_barrier")
stamp("H0 seen")
a("v_lshrrev_b32 v2, 1, v0")
a("v_and_b32 v3, 1, v0")
a("v_lshlrev_b32 v4, 10, v2")
a("v_lshl_add_u32 v4, v3, 4, v4")
a(f"s_lshl_b32 s{sT0}, s{sXCD}, 18")
a(f"s_lshl_b32 s{sT1}, s{sJ}, 5")
a(f"s_add_u32 s{sT0}, s{sT0}, s{sT1}")
a(f"s_add_u32 s{sT0}, s{sT0}, {hex(WS_KVB)}")
a(f"buffer_load_dwordx4 v[16:19], v4, {srd('WS')}, s{sT0} offen sc1", "u")
a(f"v_mul_u32_u24 v5, {U_STRIDE}, v3")
a("v_lshl_add_u32 v5, v2, 4, v5")
a(f"v_add_u32 v5, {L_U + 512}, v5")
a("s_waitcnt vmcnt(0)")
a("ds_write_b128 v5, v[16:19]")
a("s_waitcnt lgkmcnt(0)")
a("s_barrier")
stamp("u in LDS")

ACC = 8
notconv = only_wave("lt", 4, "conv")
a(f"v_and_b32 v2, 15, v{vLANE}")
a(f"v_lshrrev_b32 v3, 4, v{vLANE}")
a("v_and_b32 v4, 7, v2")
a(f"v_mul_u32_u24 v4, {KC_STRIDE}, v4")
a("v_lshrrev_b32 v5, 3, v2")
a("v_add_u32 v5, v5, v3")
a("v_lshl_add_u32 v4, v5, 4, v4")
a(f"s_lshr_b32 s{sT0}, s{sWAVE}, 1")
a(f"s_and_b32 s{sT1}, s{sWAVE}, 1")
a(f"s_mul_i32 s{sT2}, s{sT0}, {8 * KC_STRIDE}")
a(f"s_lshl_b32 s{sT1}, s{sT1}, 8")
a(f"s_add_u32 s{sT2}, s{sT2}, s{sT1}")
a(f"v_add_u32 v4, s{sT2}, v4")
a("v_lshlrev_b32 v5, 1, v2")
a("v_sub_u32 v5, v5, v3")
a("v_lshlrev_b32 v5, 4, v5")
a(f"s_mul_i32 s{sT2}, s{sT0}, {U_STRIDE}")
a(f"s_add_u32 s{sT2}, s{sT2}, {L_U + 512 + 16 - 192}")
a(f"s_sub_u32 s{sT2}, s{sT2}, s{sT1}")
a(f"v_add_u32 v5, s{sT2}, v5")


def conv_body():
    seq = []
    for res in range(4):
        ms = range(7, -1, -1) if res % 2 == 0 else range(8)
        for m in ms:
            for x in range(8 - m):
                seq.append((res, m, x))
    slots = [40 + 4 * i for i in range(12)]
    last = {}
    order = []
    for i, (res, m, x) in enumerate(seq):
        for key in (("B", res, x), ("A", res, m)):
            if key not in last:
                order.append(key)
            last[key] = i
    where = {}
    free = list(slots)
    nxt = 0
    started = set()

    def issue():
        nonlocal nxt
        while nxt < len(order) and free and len(a.lg) < 12:
            key = order[nxt]
            r = free.pop(0)
            where[key] = r
            kind, res, idx = key
            if kind == "A":
                a(f"ds_read_b128 v[{r}:{r + 3}], v4 offset:{L_KC + 512 * idx + 64 * res}", key)
            else:
                a(f"ds_read_b128 v[{r}:{r + 3}], v5 offset:{512 * idx + 64 * (3 - res)}", key)
            nxt += 1

    for i, (res, m, x) in enumerate(seq):
        issue()
        ka, kb = ("A", res, m), ("B", res, x)
        assert ka in where and kb in where
        a.wait_lg([ka, kb])
        j = m + x
        acc = vr(ACC + 4 * j, 4)
        c = acc if j in started else "0"
        started.add(j)
        a(f"v_mfma_f32_16x16x32_bf16 {acc}, {vr(where[ka], 4)}, {vr(where[kb], 4)}, {c}")
        for key in (ka, kb):
            if last[key] == i:
                free.append(where[key])


conv_body()
stamp("conv done")
conv_join = a.label("convj")
a(f"s_branch {conv_join}")
a(f"{notconv}:")
a(f"s_cmp_eq_u32 s{sWAVE}, 7")
a(f"s_cbranch_scc0 {conv_join}")
a(f"s_cmp_eq_u32 s{sJ}, 31")
a(f"s_cbranch_scc0 {conv_join}")
a(f"v_min_u32 v4, 23, v{vLANE}")
a("v_lshlrev_b32 v4, 7, v4")
a(f"s_lshl_b32 s{sT1}, s{sXCD}, 12")
a(f"s_add_u32 s{sT1}, s{sT1}, {hex(WS_FM)}")
poll(4, f"s{sT1}")
a(f"v_lshlrev_b32 v4, 2, v{vLANE}")
a(f"s_lshl_b32 s{sT1}, s{sXCD}, 8")
for b in range(6):
    for sp in range(4):
        a(f"s_add_u32 s{sT0}, s{sT1}, {hex(WS_MODP + sp * 12288 + b * 2048)}")
        a(f"buffer_load_dword v{8 + 4 * b + sp}, v4, {srd('WS')}, s{sT0} offen sc1")
a("s_waitcnt vmcnt(0)")
a(f"v_lshlrev_b32 v4, 1, v{vLANE}")
a(f"s_lshl_b32 s{sT1}, s{sXCD}, 7")
for b in range(6):
    r = 8 + 4 * b
    a(f"v_add_f32 v{r}, v{r}, v{r + 1}")
    a(f"v_add_f32 v{r + 2}, v{r + 2}, v{r + 3}")
    a(f"v_add_f32 v{r}, v{r}, v{r + 2}")
    a(f"v_cvt_pk_bf16_f32 v{r}, v{r}, v{r}")
    a(f"s_add_u32 s{sT0}, s{sT1}, {hex(WS_MODF + b * 1024)}")
    a(f"buffer_store_short v{r}, v4, {srd('WS')}, s{sT0} offen sc1")
a("s_waitcnt vmcnt(0)")
signal(WS_FF, sXCD)
a(f"{conv_join}:")
a.vm, a.lg = [], []
a("s_barrier")
sk = only_wave("lt", 4, "part")
a(f"v_and_b32 v2, 15, v{vLANE}")
a(f"v_lshrrev_b32 v3, 4, v{vLANE}")
a("v_mul_u32_u24 v3, 320, v3")
a("v_lshl_add_u32 v2, v2, 4, v3")
a(f"s_mul_i32 s{sT0}, s{sWAVE}, 10240")
a(f"v_add_u32 v2, s{sT0}, v2")
for j in range(8):
    a(f"ds_write_b128 v2, {vr(ACC + 4 * j, 4)} offset:{1280 * j}")
a(f"{sk}:")
a(f"v_lshrrev_b32 v2, 2, v{vLANE}")
a(f"v_and_b32 v3, 3, v{vLANE}")
a("v_mul_u32_u24 v3, 320, v3")
a("v_lshl_add_u32 v2, v2, 4, v3")
a(f"s_mul_i32 s{sT0}, s{sWAVE}, 1280")
a(f"v_add_u32 v2, s{sT0}, v2")
a("v_xor_b32 v3, 1, v0")
a("v_lshlrev_b32 v3, 3, v3")
a(f"v_add_u32 v3, {L_U + 512}, v3")
a("s_waitcnt lgkmcnt(0)")
a("s_barrier")
for w in range(4):
    a(f"ds_read_b128 v[{40 + 4 * w}:{43 + 4 * w}], v2 offset:{10240 * w}")
a("ds_read_b64 v[56:57], v3")
a(f"ds_read_b64 v[58:59], v3 offset:{U_STRIDE}")
a(f"s_lshl_b32 s{sT0}, s{sD}, 16")
a(f"s_and_b32 s{sT1}, s{sD}, 0xffff0000")
a(f"s_lshl_b32 s{sT2}, s{sWL}, 13")
a(f"s_add_u32 s{sT2}, s{sT2}, {hex(WS_YP)}")
a("v_lshlrev_b32 v4, 4, v0")
a("s_waitcnt lgkmcnt(0)")
unpack(60, 56, 4)
for ch in range(2):
    for r in range(4):
        a(f"v_add_f32 v{40 + 8 * ch + r}, v{40 + 8 * ch + r}, v{44 + 8 * ch + r}")
for ch in range(2):
    for r in range(4):
        a(f"v_fmac_f32 v{40 + 8 * ch + r}, s{sT0 + ch}, v{63 + 4 * ch - r}")
for r in range(4):
    a(f"v_cvt_pk_bf16_f32 v{56 + r}, v{40 + r}, v{48 + r}")
a(f"buffer_store_dwordx4 v[56:59], v4, {srd('WS')}, s{sT2} offen sc1")
stamp("y stored")
a("s_waitcnt vmcnt(0)")
a("s_barrier")
sk = only_wave("eq", 0, "sig1")
signal(WS_F1, sWL)
a(f"{sk}:")
a.vm = []
stamp("y drained")

a(f"s_and_b32 s{sT0}, s{sXCD}, 3")
a(f"s_lshl_b32 s{sT0}, s{sT0}, 2")
a(f"s_and_b32 s{sT1}, s{sJ}, 3")
a(f"s_add_u32 s{sMB}, s{sT0}, s{sT1}")
a(f"s_lshr_b32 s{sT0}, s{sXCD}, 2")
a(f"s_mul_i32 s{sT0}, s{sT0}, 7")
a(f"s_lshr_b32 s{sT1}, s{sJ}, 2")
a(f"s_add_u32 s{sFB}, s{sT0}, s{sT1}")
a(f"s_lshl_b32 s{sT0}, s{sXCD}, 2")
a(f"s_lshr_b32 s{sT1}, s{sJ}, 3")
a(f"s_add_u32 s{sSB}, s{sT0}, s{sT1}")
a(f"s_and_b32 s{sDB}, s{sJ}, 7")


def load_wgu(half):
    skip = a.label("now")
    a(f"s_cmp_lt_u32 s{sJ}, 28")
    a(f"s_cbranch_scc0 {skip}")
    a(f"v_lshrrev_b32 v2, 4, v{vLANE}")
    a(f"v_bfe_u32 v3, v{vLANE}, 1, 3")
    a("v_lshlrev_b32 v4, 1, v2")
    a("v_sub_u32 v3, v3, v4")
    a("v_mul_u32_u24 v2, 3584, v2")
    a(f"v_and_b32 v4, 1, v{vLANE}")
    a("v_lshl_add_u32 v2, v4, 4, v2")
    a("v_and_b32 v4, 7, v3")
    a("v_lshl_add_u32 v4, v4, 5, v2")
    a("v_subrev_u32 v3, 1, v3")
    a("v_and_b32 v3, 7, v3")
    a("v_lshl_add_u32 v5, v3, 5, v2")
    a(f"s_mul_i32 s{sT0}, s{sWAVE}, {4 * 3584}")
    a(f"s_lshl_b32 s{sT1}, s{sFB}, 8")
    a(f"s_add_u32 s{sT0}, s{sT0}, s{sT1}")
    a(f"s_lshl_b32 s{sT2}, s{sWAVE}, 11")
    for i in range(8):
        a(f"s_add_u32 s{sT1}, s{sT0}, {(256 * half + 32 * i) * 3584}")
        a(f"s_add_u32 m0, s{sT2}, {16384 * i}")
        a(f"buffer_load_dwordx4 v4, {srd('WG')}, s{sT1} offen lds")
        a(f"s_add_u32 m0, s{sT2}, {16384 * i + 1024}")
        a(f"buffer_load_dwordx4 v5, {srd('WU')}, s{sT1} offen lds")
    a(f"v_bfe_u32 v2, v{vLANE}, 4, 1")
    a(f"v_lshrrev_b32 v3, 5, v{vLANE}")
    a(f"v_bfe_u32 v4, v{vLANE}, 2, 2")
    a("v_lshl_add_u32 v5, v4, 1, v2")
    a(f"v_add_u32 v5, s{sWAVE}, v5")
    a("v_and_b32 v5, 7, v5")
    a("v_lshlrev_b32 v5, 5, v5")
    a("v_lshl_add_u32 v5, v4, 8, v5")
    a("v_lshl_add_u32 v5, v2, 10, v5")
    a("v_lshl_add_u32 v5, v3, 12, v5")
    a(f"v_and_b32 v2, 1, v{vLANE}")
    a("v_lshl_add_u32 v5, v2, 4, v5")
    a(f"v_bfe_u32 v2, v{vLANE}, 1, 1")
    a("v_lshl_add_u32 v5, v2, 3, v5")
    a("v_add_u32 v6, 0x10000, v5")
    a("s_waitcnt vmcnt(0)")
    a("s_barrier")
    for ks in range(16):
        for b in range(2):
            off = (4 * ks + b) * 2048
            r = 64 * half + 4 * ks + 2 * b
            a(f"ds_read_b64_tr_b16 a[{r}:{r + 1}], v{5 + (off >> 16)} offset:{off & 0xffff}")
    a("s_waitcnt lgkmcnt(0)")
    a("s_barrier")
    a(f"{skip}:")
    a.vm, a.lg = [], []


load_wgu(0)
stamp("wgu half 0")

sk = only_wave("eq", 0, "hf")
a(f"v_and_b32 v4, 7, v{vLANE}")
a("v_lshlrev_b32 v4, 7, v4")
a(f"s_mov_b32 s{sT1}, {hex(WS_FF)}")
poll(4, f"s{sT1}")
a(f"{sk}:")
a("s_barrier")
a(f"v_lshlrev_b32 v4, 4, v{vLANE}")
a(f"s_mov_b32 s{sT0}, {hex(WS_MODF)}")
a(f"s_mov_b32 s{sT1}, {hex(WS_MODF + 4096)}")
for b in range(4):
    a(f"buffer_load_dwordx4 v[{8 + 4 * b}:{11 + 4 * b}], v4, {srd('WS')}, s{sT0} offen offset:{1024 * b} sc1")
a(f"buffer_load_dwordx4 v[24:27], v4, {srd('WS')}, s{sT1} offen sc1")
a("s_waitcnt vmcnt(0)")
unpack(32, 8, 4)
unpack(40, 12, 4)
unpack(48, 16, 4)
unpack(vS2, 20, 4)
unpack(vC2, 24, 4)
for base in (40, vC2):
    for e in range(8):
        a(f"v_add_f32 v{base + e}, 1.0, v{base + e}")
    for i in range(4):
        a(f"v_cvt_pk_bf16_f32 v{56 + i}, v{base + 2 * i}, v{base + 2 * i + 1}")
    unpack(base, 56, 4)
for e in range(8):
    a(f"v_fma_f32 v{vG + e}, v{vG + e}, v{40 + e}, v{32 + e}")
for e in range(8):
    a(f"v_mul_f32 v{vG + e}, v{vG + e}, v{48 + e}")
stamp("mod ready")

sk = only_wave("lt", 4, "h1")
a("v_lshlrev_b32 v4, 7, v0")
a(f"s_mov_b32 s{sT1}, {hex(WS_F1)}")
poll(4, f"s{sT1}")
a(f"{sk}:")
a("s_barrier")
stamp("H1 seen")
a("v_lshrrev_b32 v2, 1, v0")
a("v_and_b32 v3, 1, v0")
a("v_lshlrev_b32 v4, 13, v2")
a("v_lshl_add_u32 v4, v3, 4, v4")
a(f"s_lshl_b32 s{sT0}, s{sWL}, 5")
a(f"s_add_u32 s{sT0}, s{sT0}, {hex(WS_YP)}")
a(f"buffer_load_dwordx4 v[8:11], v4, {srd('WS')}, s{sT0} offen sc1")
sk = only_wave("eq", 7, "tag")
a(f"s_cmp_eq_u32 s{sWL}, 0")
a(f"s_cbranch_scc0 {sk}")
a(f"v_mov_b32 v5, s{sN}")
a("v_mov_b32 v6, 0")
a("s_mov_b64 exec, 1")
a(f"buffer_store_dword v5, v6, {srd('WS')}, 0 offen sc1")
a("s_mov_b64 exec, -1")
a(f"{sk}:")
a("v_mul_u32_u24 v5, 4160, v3")
a("v_lshl_add_u32 v5, v2, 2, v5")
a(f"s_mul_i32 s{sT0}, s{sWAVE}, 1040")
a(f"v_lshl_add_u32 v6, v{vLANE}, 4, s{sT0}")
a("s_waitcnt vmcnt(0)")
stamp("y loaded")
for r in range(4):
    a(f"ds_write_b32 v5, v{8 + r} offset:{1040 * r}")
a("s_waitcnt lgkmcnt(0)")
a("s_barrier")
a("ds_read_b128 v[8:11], v6")
a(f"s_lshl_b32 s{sT0}, s{sWL}, 3")
a(f"s_add_u32 s{sT0}, s{sT0}, s{sWAVE}")
a(f"s_lshl_b32 s{sT0}, s{sT0}, 10")
a(f"s_add_u32 s{sT1}, s{sT0}, {hex(WS_X1)}")
a(f"s_add_u32 s{sT0}, s{sT0}, {hex(WS_H2)}")
a(f"v_lshlrev_b32 v4, 4, v{vLANE}")
a("s_waitcnt lgkmcnt(0)")
unpack(16, 8, 4)
for e in range(8):
    a(f"v_fma_f32 v{16 + e}, v{16 + e}, v{vG + e}, v{vQ + e}")
a("v_add_f32 v24, v16, v17")
a("v_mul_f32 v25, v16, v16")
a("v_fmac_f32 v25, v17, v17")
for e in range(2, 8):
    a(f"v_add_f32 v24, v24, v{16 + e}")
    a(f"v_fmac_f32 v25, v{16 + e}, v{16 + e}")
for i in range(4):
    a(f"v_cvt_pk_bf16_f32 v{12 + i}, v{16 + 2 * i}, v{17 + 2 * i}")
wave_sum([24, 25], [26, 27])
a(f"v_mul_f32 v24, {1.0 / 512}, v24")
a("v_mul_f32 v26, v24, v24")
a(f"v_mul_f32 v25, {1.0 / 512}, v25")
a("v_sub_f32 v25, v25, v26")
a("v_max_f32 v25, 0, v25")
a("v_add_f32 v25, 0x3727c5ac, v25")
a("v_rsq_f32 v25, v25")
for e in range(8):
    a(f"v_sub_f32 v{16 + e}, v{16 + e}, v24")
for e in range(8):
    a(f"v_mul_f32 v{16 + e}, v{16 + e}, v25")
for e in range(8):
    a(f"v_fma_f32 v{16 + e}, v{16 + e}, v{vC2 + e}, v{vS2 + e}")
for i in range(4):
    a(f"v_cvt_pk_bf16_f32 v{8 + i}, v{16 + 2 * i}, v{17 + 2 * i}")
a(f"buffer_store_dwordx4 v[8:11], v4, {srd('WS')}, s{sT0} offen sc1")
a(f"buffer_store_dwordx4 v[12:15], v4, {srd('WS')}, s{sT1} offen sc1")
stamp("h2 stored")
a("s_waitcnt vmcnt(0)")
a("s_barrier")
sk = only_wave("eq", 0, "sig15")
signal(WS_F15, sWL)
a(f"{sk}:")
a.vm = []
stamp("h2 drained")
load_wgu(1)
stamp("wgu half 1")

nog1 = a.label("nog1")
a(f"s_cmp_lt_u32 s{sJ}, 28")
a(f"s_cbranch_scc0 {nog1}")
sk = only_wave("eq", 0, "h15")
a(f"v_and_b32 v4, 15, v{vLANE}")
a("v_lshlrev_b32 v4, 7, v4")
a(f"s_lshl_b32 s{sT1}, s{sMB}, 11")
a(f"s_add_u32 s{sT1}, s{sT1}, {hex(WS_F15)}")
poll(4, f"s{sT1}")
a(f"{sk}:")
a("s_barrier")
stamp("H1.5 seen")
a(f"v_lshlrev_b32 v4, 4, v{vLANE}")
a(f"s_lshl_b32 s{sT0}, s{sMB}, 7")
a(f"s_add_u32 s{sT0}, s{sT0}, s{sWAVE}")
a(f"s_lshl_b32 s{sT0}, s{sT0}, 10")
a(f"s_mul_i32 s{sT2}, s{sWAVE}, 1040")
for st in range(4):
    for i in range(4):
        row = 32 * st + 8 * i
        a(f"s_add_u32 s{sT1}, s{sT0}, {hex(WS_H2 + row * 1024)}")
        a(f"s_add_u32 m0, s{sT2}, {row * 1040}")
        a(f"buffer_load_dwordx4 v4, {srd('WS')}, s{sT1} offen sc1 lds", ("h2", st))
a(f"v_and_b32 v2, 31, v{vLANE}")
a("v_mul_u32_u24 v2, 1040, v2")
a(f"v_lshrrev_b32 v3, 5, v{vLANE}")
a("v_lshl_add_u32 v5, v3, 4, v2")
a(f"s_mul_i32 s{sT0}, s{sMB}, {4 * 114688}")
a(f"s_lshl_b32 s{sT1}, s{sFB}, 3")
a(f"s_add_u32 s{sT1}, s{sT1}, s{sWAVE}")
a(f"s_lshl_b32 s{sT1}, s{sT1}, 10")
a(f"s_add_u32 s{sT0}, s{sT0}, s{sT1}")
C1 = -2.0 * math.sqrt(2.0 / math.pi) * LOG2E
C2 = C1 * 0.044715
a(f"v_mov_b32 v6, {C1}")
a(f"v_mov_b32 v7, {C2}")
NB = 6
for st in range(4):
    a.wait_vm(("h2", st))
    a("s_barrier")
    for ks in range(NB):
        a(f"ds_read_b128 v[{32 + 4 * ks}:{35 + 4 * ks}], v5 offset:{32 * ks}", ks)
    for ks in range(32):
        a.wait_lg(ks)
        r = 32 + 4 * (ks % NB)
        a(f"v_mfma_f32_32x32x16_bf16 v[8:23], a[{4 * ks}:{4 * ks + 3}], v[{r}:{r + 3}], {'v[8:23]' if ks else '0'}")
        if ks + NB < 32:
            a(f"ds_read_b128 v[{r}:{r + 3}], v5 offset:{32 * (ks + NB)}", ks + NB)
    if st < 3:
        a("v_add_u32 v5, 33280, v5")
    for e in range(8):
        a(f"v_mul_f32 v{56 + e}, v{8 + e}, v{8 + e}")
    for e in range(8):
        a(f"v_fma_f32 v{56 + e}, v{56 + e}, v7, v6")
    for e in range(8):
        a(f"v_mul_f32 v{56 + e}, v{56 + e}, v{8 + e}")
    for e in range(8):
        a(f"v_exp_f32 v{56 + e}, v{56 + e}")
    for e in range(8):
        a(f"v_mul_f32 v{64 + e}, v{8 + e}, v{16 + e}")
    for e in range(8):
        a(f"v_add_f32 v{56 + e}, 1.0, v{56 + e}")
    for e in range(8):
        a(f"v_rcp_f32 v{56 + e}, v{56 + e}")
    for e in range(8):
        a(f"v_mul_f32 v{64 + e}, v{64 + e}, v{56 + e}")
    o = 72 + 4 * (st & 1)
    for i in range(4):
        a(f"v_cvt_pk_bf16_f32 v{o + i}, v{64 + 2 * i}, v{65 + 2 * i}")
    a(f"s_add_u32 s{sT1}, s{sT0}, {hex(WS_HH + st * 114688)}")
    a(f"buffer_store_dwordx4 v[{o}:{o + 3}], v4, {srd('WS')}, s{sT1} offen sc1")
    stamp(f"g1 tile {st}")
a("s_waitcnt vmcnt(0)")
a("s_barrier")
sk = only_wave("eq", 0, "sig2")
a(f"s_lshl_b32 s{sT1}, s{sMB}, 4")
a(f"s_add_u32 s{sT1}, s{sT1}, s{sFB}")
signal(WS_F2, sT1)
a(f"{sk}:")
a(f"{nog1}:")
a.vm, a.lg = [], []
stamp("hh drained")

sDT, sKQ = 99, 3
a(f"s_and_b32 s{sDT}, s{sWAVE}, 1")
a(f"s_lshr_b32 s{sKQ}, s{sWAVE}, 1")
a(f"v_lshrrev_b32 v2, 3, v{vLANE}")
a(f"v_and_b32 v3, 7, v{vLANE}")
a("v_and_b32 v4, 2, v2")
a("v_lshlrev_b32 v4, 1, v4")
a("v_xor_b32 v3, v3, v4")
a("v_lshlrev_b32 v3, 4, v3")
a("v_lshl_add_u32 v4, v2, 10, v3")
a(f"s_mul_i32 s{sT0}, s{sKQ}, 56")
a(f"s_add_u32 s{sT0}, s{sT0}, s{sDT}")
a(f"s_lshl_b32 s{sT0}, s{sT0}, 13")
a(f"s_lshl_b32 s{sT1}, s{sDB}, 7")
a(f"s_add_u32 s{sT0}, s{sT0}, s{sT1}")
a(f"s_mul_i32 s{sT2}, s{sKQ}, 28")
a(f"s_lshl_b32 s{sT3}, s{sT2}, 10")
a(f"s_add_u32 s{sT2}, s{sT2}, s{sDT}")
a(f"s_lshl_b32 s{sT2}, s{sT2}, 10")
a(f"v_bfe_u32 v2, v{vLANE}, 4, 1")
a(f"v_lshl_add_u32 v2, s{sDT}, 1, v2")
a(f"v_bfe_u32 v3, v{vLANE}, 2, 2")
a("v_and_b32 v5, 2, v3")
a("v_xor_b32 v2, v2, v5")
a("v_lshlrev_b32 v2, 5, v2")
a("v_lshl_add_u32 v2, v3, 7, v2")
a(f"v_and_b32 v3, 3, v{vLANE}")
a("v_lshl_add_u32 v2, v3, 3, v2")
a(f"v_lshrrev_b32 v3, 5, v{vLANE}")
a("v_lshl_add_u32 v2, v3, 10, v2")
a(f"v_add_u32 v5, s{sT3}, v2")
for rho in range(2):
    for i in range(14):
        a(f"s_add_u32 s{sT1}, s{sT0}, {(14 * rho + i) * 16384}")
        a(f"s_add_u32 m0, s{sT2}, {2048 * i}")
        a(f"buffer_load_dwordx4 v4, {srd('WD')}, s{sT1} offen lds")
    a("s_waitcnt vmcnt(0)")
    a("s_barrier")
    for i in range(14):
        for b in range(2):
            r = 4 * (14 * rho + i) + 2 * b
            a(f"ds_read_b64_tr_b16 a[{r}:{r + 1}], v5 offset:{2048 * i + 512 * b}")
    a("s_waitcnt lgkmcnt(0)")
    a("s_barrier")
stamp("wd ready")

sk = only_wave("eq", 0, "h2")
a(f"v_min_u32 v4, 13, v{vLANE}")
a("v_lshlrev_b32 v4, 7, v4")
a(f"s_lshr_b32 s{sT1}, s{sSB}, 1")
a(f"s_lshl_b32 s{sT1}, s{sT1}, 11")
a(f"s_add_u32 s{sT1}, s{sT1}, {hex(WS_F2)}")
poll(4, f"s{sT1}")
a(f"{sk}:")
a("s_barrier")
stamp("H2 seen")
a(f"v_lshlrev_b32 v4, 4, v{vLANE}")
a(f"s_lshl_b32 s{sT0}, s{sSB}, 1")
a(f"s_add_u32 s{sT0}, s{sT0}, s{sDT}")
a(f"s_mul_i32 s{sT0}, s{sT0}, 114688")
a(f"s_add_u32 s{sT0}, s{sT0}, s{sT3}")
a(f"s_lshl_b32 s{sT2}, s{sWAVE}, 12")
RING = 5


def hh_dma(ph):
    a(f"s_add_u32 s{sT1}, s{sT0}, {hex(WS_HH + ph * 4096)}")
    a(f"s_add_u32 m0, s{sT2}, {32768 * (ph % RING)}")
    for i in range(4):
        a(f"buffer_load_dwordx4 v4, {srd('WS')}, s{sT1} offen offset:{1024 * i} sc1 lds", ("hh", ph))


a(f"v_lshrrev_b32 v2, 5, v{vLANE}")
a(f"v_lshl_add_u32 v2, s{sWAVE}, 1, v2")
a(f"v_and_b32 v3, 16, v{vLANE}")
a("v_add_u32 v2, v2, v3")
a(f"v_and_b32 v3, 15, v{vLANE}")
a("v_mul_u32_u24 v7, 528, v3")
a("v_lshl_add_u32 v7, v2, 4, v7")
a("v_lshlrev_b32 v3, 3, v3")
a(f"s_lshl_b32 s{sT1}, s{sDB}, 7")
a(f"v_add_u32 v3, s{sT1}, v3")
a(f"s_lshl_b32 s{sT1}, s{sSB}, 16")
a("v_lshl_add_u32 v6, v2, 10, v3")
a(f"v_add_u32 v6, s{sT1}, v6")
a(f"s_mov_b32 s{sT1}, {hex(WS_MODF + 5 * 1024)}")
a(f"buffer_load_dwordx2 v[80:81], v3, {srd('WS')}, s{sT1} offen sc1", "epi")
for st in range(2):
    a(f"s_mov_b32 s{sT1}, {hex(WS_X1 + st * 32768)}")
    a(f"buffer_load_dwordx2 v[{82 + 2 * st}:{83 + 2 * st}], v6, {srd('WS')}, s{sT1} offen sc1", "epi")
for ph in range(RING):
    hh_dma(ph)
a(f"s_lshl_b32 s{sT1}, s{sKQ}, 13")
a(f"v_add_u32 v5, s{sT1}, v4")
a("v_add_u32 v72, 0x10000, v5")
a("v_add_u32 v73, 0x20000, v5")
for ph in range(7):
    a.wait_vm(("hh", ph))
    a("s_barrier")
    if 1 <= ph and ph - 1 + RING < 7:
        hh_dma(ph - 1 + RING)
    off = 32768 * (ph % RING)
    va = (5, 72, 73)[off >> 16]
    for i in range(4):
        for st in range(2):
            r = 40 + 4 * (2 * i + st)
            a(f"ds_read_b128 v[{r}:{r + 3}], v{va} offset:{(off & 0xffff) + 4096 * st + 1024 * i}", (i, st))
    for i in range(4):
        for st in range(2):
            a.wait_lg([(i, st)])
            r = 40 + 4 * (2 * i + st)
            ks = 4 * ph + i
            acc = vr(8 + 16 * st, 16)
            a(f"v_mfma_f32_32x32x16_bf16 {acc}, a[{4 * ks}:{4 * ks + 3}], v[{r}:{r + 3}], {acc if ks else '0'}")
stamp("g2 done")
a("s_barrier")
a(f"v_and_b32 v2, 31, v{vLANE}")
a(f"v_lshrrev_b32 v3, 5, v{vLANE}")
a("v_mul_u32_u24 v3, 528, v3")
a("v_lshl_add_u32 v2, v2, 4, v3")
a(f"s_mul_i32 s{sT0}, s{sWAVE}, 4224")
a(f"v_add_u32 v2, s{sT0}, v2")
for st in range(2):
    for q in range(4):
        a(f"ds_write_b128 v2, {vr(8 + 16 * st + 4 * q, 4)} offset:{33792 * st + 1056 * q}")
unpack(72, 80, 2)
unpack(64, 82, 4)
a("s_waitcnt lgkmcnt(0)")
a("s_barrier")
for st in range(2):
    for kq in range(4):
        r = 8 + 16 * st + 4 * kq
        a(f"ds_read_b128 v[{r}:{r + 3}], v7 offset:{33792 * st + 8448 * kq}", st)
for st in range(2):
    a.wait_lg(st)
    b = 8 + 16 * st
    for e in range(4):
        a(f"v_add_f32 v{b + e}, v{b + e}, v{b + 4 + e}")
        a(f"v_add_f32 v{b + 8 + e}, v{b + 8 + e}, v{b + 12 + e}")
    for e in range(4):
        a(f"v_add_f32 v{b + e}, v{b + e}, v{b + 8 + e}")
    for e in range(4):
        a(f"v_fma_f32 v{b + e}, v{b + e}, v{72 + e}, v{64 + 4 * st + e}")
    a(f"v_cvt_pk_bf16_f32 v{b}, v{b}, v{b + 1}")
    a(f"v_cvt_pk_bf16_f32 v{b + 1}, v{b + 2}, v{b + 3}")
    a(f"s_mov_b32 s{sT1}, {32768 * st}")
    a(f"buffer_store_dwordx2 v[{b}:{b + 1}], v6, {srd('OUT')}, s{sT1} offen sc1")
stamp("out stored")
if DIAG:
    a("s_waitcnt vmcnt(0)")
    stamp("out drained")
    a(f"s_lshl_b32 s{sT0}, s2, 3")
    a(f"s_add_u32 s{sT0}, s{sT0}, s{sWAVE}")
    a(f"s_lshl_b32 s{sT0}, s{sT0}, 8")
    a(f"s_add_u32 s{sT0}, s{sT0}, {hex(WS_PROF)}")
    a(f"v_lshlrev_b32 v4, 2, v{vLANE}")
    a(f"buffer_store_dword v{vPROF}, v4, {srd('WS')}, s{sT0} offen")
a("L_end:")
a("s_endpgm")

lines, nn = fix_hazards(a.lines)
head = open(f"cdna_kernels/{NAME}.s.ref").read().split("; Override launch")[0]
text = head + f"; @launch grid=(256,1,1) block=(512,1,1) lds={LDS_BYTES}\n"
text += f""".amdgcn_target "amdgcn-amd-amdhsa--gfx950"
.text
.globl {NAME}_kernel
.p2align 8
.type {NAME}_kernel,@function
{NAME}_kernel:
""" + "\n".join(lines) + f"""
.section .rodata,"a"
.p2align 6
.amdhsa_kernel {NAME}_kernel
  .amdhsa_next_free_vgpr 256
  .amdhsa_next_free_sgpr 102
  .amdhsa_accum_offset 128
  .amdhsa_group_segment_fixed_size 0
  .amdhsa_kernarg_size 120
  .amdhsa_user_sgpr_count 2
  .amdhsa_user_sgpr_kernarg_segment_ptr 1
  .amdhsa_system_sgpr_workgroup_id_x 1
.end_amdhsa_kernel
"""
open(OUT, "w").write(text)
if DIAG:
    open(OUT[:-2] + ".stamps", "w").write("\n".join(stamp_names))
print(f"{len(lines)} lines, {nn} nops inserted -> {OUT}")
```

```python
import sys, math
from asmlib import *

NAME = "adaLN_cond__ssm_conv_h3__glu_gated_geglu__prompt"
DIAG = "--diag" in sys.argv
PROBE = [x[8:] for x in sys.argv if x.startswith("--probe=")]
PROBE = PROBE[0] if PROBE else None
OUT = [x for x in sys.argv[1:] if not x.startswith("--")]
OUT = OUT[0] if OUT else f"cdna_kernels/{NAME}.s"

WS_E, WS_F0, WS_FM, WS_FF, WS_F1, WS_F15, WS_F2 = 0, 0x10000, 0x18000, 0x20000, 0x28000, 0x30000, 0x38000
WS_MODP, WS_MODF, WS_PROF = 0x40000, 0x50000, 0x60000
WS_KVB, WS_YP, WS_H2, WS_X1, WS_HH = 0x100000, 0x300000, 0x500000, 0x700000, 0x900000
WS_SIZE = 0x1000000

SRD = dict(Q=36, K=40, V=44, SH=48, SK=52, WG=56, WU=60, WD=64, WM=68, OUT=72, WS=76, C=80)
PTR = dict(Q=4, K=6, V=8, SH=10, SK=12, D=14, WG=18, WU=20, WD=22, C=24, WM=26, OUT=28, WS=32)
SIZE = dict(Q=1 << 21, K=1 << 21, V=1 << 21, SH=4096, SK=1 << 21, WG=1835008, WU=1835008, WD=1835008,
            WM=3145728, OUT=1 << 21, WS=WS_SIZE, C=1024)
sWAVE, sXCD, sJ, sWL, sN, sD = 84, 85, 86, 87, 88, 89
sT0, sT1, sT2, sT3, sCNT = 90, 91, 92, 93, 94
sMB, sFB, sSB, sDB = 95, 96, 97, 98
sSTAMP = 100
srd = lambda n: f"s[{SRD[n]}:{SRD[n] + 3}]"

KC_STRIDE = 4160
L_KC = 0
L_U = 66560
U_STRIDE = 4672
L_MISC = 76032
L_YT = 78336
LDS_BYTES = 163840

vTID, vLANE, vPROF = 0, 1, 127
vQ, vG, vC2, vS2 = 88, 96, 104, 112

a = Asm()
nstamp = [0]
stamp_names = []


def stamp(name):
    if PROBE == name:
        a(f"s_memrealtime s[{sSTAMP}:{sSTAMP + 1}]")
        a("s_waitcnt lgkmcnt(0)")
    if not DIAG:
        return
    a(f"s_memrealtime s[{sSTAMP}:{sSTAMP + 1}]")
    a("s_waitcnt lgkmcnt(0)")
    a(f"v_writelane_b32 v{vPROF}, s{sSTAMP}, {nstamp[0]}")
    stamp_names.append(name)
    nstamp[0] += 1


def make_srd(n):
    b = SRD[n]
    a(f"s_mov_b32 s{b}, s{PTR[n]}")
    a(f"s_mov_b32 s{b + 1}, s{PTR[n] + 1}")
    a(f"s_mov_b32 s{b + 2}, {hex(SIZE[n])}")
    a(f"s_mov_b32 s{b + 3}, 0x20000")


def signal(base, idx_sgpr):
    a(f"s_lshl_b32 s{sT0}, s{idx_sgpr}, 7")
    a(f"s_add_u32 s{sT0}, s{sT0}, {hex(base)}")
    a(f"v_mov_b32 v2, s{sN}")
    a("v_mov_b32 v3, 0")
    a("s_mov_b64 exec, 1")
    a(f"buffer_store_dword v2, v3, {srd('WS')}, s{sT0} offen sc1")
    a("s_mov_b64 exec, -1")


def poll(vaddr, soff, delay=0):
    lp, done = a.label("poll"), a.label("polled")
    if delay:
        a(f"s_sleep {delay}")
    a(f"s_mov_b32 s{sCNT}, 0x8000")
    a(f"{lp}:")
    a(f"buffer_load_dword v2, v{vaddr}, {srd('WS')}, {soff} offen sc1")
    a("s_waitcnt vmcnt(0)")
    a(f"v_cmp_ne_u32 vcc, s{sN}, v2")
    a(f"s_cbranch_vccz {done}")
    a(f"s_sub_u32 s{sCNT}, s{sCNT}, 1")
    a(f"s_cmp_lg_u32 s{sCNT}, 0")
    a(f"s_cbranch_scc1 {lp}")
    a(f"{done}:")


def wave_sum(regs, tmps):
    for m in ("quad_perm:[1,0,3,2]", "quad_perm:[2,3,0,1]", "row_half_mirror", "row_mirror"):
        for r in regs:
            a(f"v_add_f32_dpp v{r}, v{r}, v{r} {m} row_mask:0xf bank_mask:0xf")
    for op in ("v_permlane16_swap_b32", "v_permlane32_swap_b32"):
        for r, t in zip(regs, tmps):
            a(f"v_mov_b32 v{t}, v{r}")
        for r, t in zip(regs, tmps):
            a(f"{op} v{r}, v{t}")
        for r, t in zip(regs, tmps):
            a(f"v_add_f32 v{r}, v{r}, v{t}")


def unpack(dst, src, n):
    for i in range(n):
        a(f"v_and_b32 v{dst + 2 * i + 1}, 0xffff0000, v{src + i}")
        a(f"v_lshlrev_b32 v{dst + 2 * i}, 16, v{src + i}")


def only_wave(cmp, val, name):
    skip = a.label(name)
    a(f"s_cmp_{cmp}_u32 s{sWAVE}, {val}")
    a(f"s_cbranch_scc0 {skip}")
    return skip


a("s_cmp_ge_u32 s2, 256")
a("s_cbranch_scc1 L_end")
a("s_load_dwordx16 s[4:19], s[0:1], 0")
a("s_load_dwordx8 s[20:27], s[0:1], 64")
a("s_load_dwordx4 s[28:31], s[0:1], 96")
a("s_load_dwordx2 s[32:33], s[0:1], 112")
if DIAG or PROBE:
    a(f"v_mov_b32 v{vPROF}, 0")
    a(f"s_memrealtime s[{sSTAMP}:{sSTAMP + 1}]")
a(f"v_and_b32 v{vLANE}, 63, v0")
a("v_lshrrev_b32 v2, 6, v0")
a(f"v_readfirstlane_b32 s{sWAVE}, v2")
a(f"s_and_b32 s{sXCD}, s2, 7")
a(f"s_lshr_b32 s{sJ}, s2, 3")
a(f"s_lshl_b32 s{sWL}, s{sXCD}, 5")
a(f"s_add_u32 s{sWL}, s{sWL}, s{sJ}")
for r in list(range(16, 35)) + [60, 61]:
    a(f"v_mov_b32 v{r}, 0")
a(f"s_lshl_b32 s{sT0}, s{sJ}, 3")
a(f"s_add_u32 s{sT0}, s{sT0}, s{sWAVE}")
a(f"s_lshl_b32 s{sT1}, s{sT0}, 13")
a(f"s_lshl_b32 s{sT2}, s{sXCD}, 7")
a(f"s_add_u32 s{sT1}, s{sT1}, s{sT2}")
a(f"v_lshl_add_u32 v4, v{vLANE}, 1, s{sT1}")
a("v_subrev_u32 v5, 3072, v4")
a("v_add_u32 v6, 4096, v4")
a(f"s_lshl_b32 s{sT2}, s{sXCD}, 9")
a(f"v_lshl_add_u32 v7, v{vLANE}, 3, s{sT2}")
a(f"s_lshl_b32 s{sT0}, s{sT0}, 10")
a(f"s_lshl_b32 s{sT2}, s{sXCD}, 18")
a(f"s_add_u32 s{sT0}, s{sT0}, s{sT2}")
a(f"v_lshl_add_u32 v8, v{vLANE}, 4, s{sT0}")
a(f"s_lshl_b32 s{sT0}, s{sWL}, 13")
a(f"v_lshl_add_u32 v9, v0, 4, s{sT0}")
a("v_subrev_u32 v10, 16, v9")
a("v_and_b32 v11, 255, v0")
a("v_cmp_eq_u32 vcc, 0, v11")
a("v_mov_b32 v12, 0x80000000")
a("v_cndmask_b32 v10, v10, v12, vcc")
a(f"s_lshl_b32 s{sT0}, s{sWL}, 3")
a(f"s_add_u32 s{sT0}, s{sT0}, s{sWAVE}")
a(f"s_lshl_b32 s{sT0}, s{sT0}, 10")
a(f"v_lshl_add_u32 v13, v{vLANE}, 4, s{sT0}")
a("s_waitcnt lgkmcnt(0)")
if DIAG:
    a(f"v_writelane_b32 v{vPROF}, s{sSTAMP}, 0")
    stamp_names.append("start")
    nstamp[0] = 1
make_srd("K")
make_srd("V")
make_srd("SH")
a(f"s_load_dword s{sN}, s[32:33], 0")
a(f"s_lshl_b32 s{sT0}, s{sWL}, 2")
a(f"s_load_dword s{sD}, s[14:15], s{sT0}")
stamp("kernarg")
NT = "nt"
a(f"buffer_load_dwordx2 v[36:37], v7, {srd('SH')}, 0 offen", "kv")
for i in range(11):
    va, off = (5, i * 1024) if i < 3 else ((4, (i - 3) * 1024) if i < 7 else (6, (i - 7) * 1024))
    a(f"buffer_load_short_d16_hi v{16 + i}, v{va}, {srd('K')}, 0 offen offset:{off}", "kv")
for i in range(8):
    va, off = (4, i * 1024) if i < 4 else (6, (i - 4) * 1024)
    a(f"buffer_load_short_d16_hi v{27 + i}, v{va}, {srd('V')}, 0 offen offset:{off} {NT}", "kv")
for n in ("SK", "Q", "WM", "C", "WS", "WG", "WU", "WD", "OUT"):
    make_srd(n)
a(f"buffer_load_dwordx4 v[44:47], v9, {srd('SK')}, 0 offen", "K")
a(f"buffer_load_dwordx4 v[40:43], v10, {srd('SK')}, 0 offen", "K")
a(f"buffer_load_dwordx4 v[48:51], v13, {srd('Q')}, 0 offen {NT}", "q")
a(f"s_lshr_b32 s{sT0}, s{sJ}, 2")
a(f"s_lshl_b32 s{sT0}, s{sT0}, 10")
a(f"s_lshl_b32 s{sT1}, s{sXCD}, 7")
a(f"s_add_u32 s{sT0}, s{sT0}, s{sT1}")
a(f"s_and_b32 s{sT1}, s{sJ}, 3")
a(f"s_lshl_b32 s{sT1}, s{sT1}, 7")
a("v_lshrrev_b32 v14, 3, v0")
a(f"v_add_u32 v14, s{sT1}, v14")
a("v_mul_u32_u24 v15, 6144, v14")
a("v_and_b32 v11, 7, v0")
a("v_lshl_add_u32 v15, v11, 4, v15")
a(f"s_cmp_lt_u32 s{sJ}, 24")
a(f"s_cselect_b32 s{sT0}, s{sT0}, 0x40000000")
a(f"s_add_u32 s{sT1}, s{sT0}, {64 * 6144}")
a("v_lshlrev_b32 v14, 1, v14")
a(f"buffer_load_dwordx4 v[52:55], v15, {srd('WM')}, s{sT0} offen {NT}", "wm")
a(f"buffer_load_dwordx4 v[56:59], v15, {srd('WM')}, s{sT1} offen {NT}", "wm")
a(f"buffer_load_short_d16_hi v60, v14, {srd('C')}, 0 offen", "wm")
a(f"buffer_load_short_d16_hi v61, v14, {srd('C')}, 0 offen offset:128", "wm")
for r in range(64, 68):
    a(f"v_mov_b32 v{r}, 0")
sk = only_wave("eq", 0, "zp0")
a(f"v_mul_u32_u24 v2, {KC_STRIDE}, v{vLANE}")
a("s_mov_b64 exec, 0xffff")
a(f"ds_write_b128 v2, v[64:67] offset:{L_KC}")
a("s_mov_b64 exec, -1")
a(f"v_and_b32 v2, 31, v{vLANE}")
a("v_lshlrev_b32 v2, 4, v2")
a(f"v_lshrrev_b32 v3, 5, v{vLANE}")
a(f"v_mul_u32_u24 v3, {U_STRIDE}, v3")
a(f"v_add_u32 v3, {L_U}, v3")
a("v_add_u32 v2, v2, v3")
a("ds_write_b128 v2, v[64:67]")
a(f"{sk}:")
a("s_waitcnt lgkmcnt(0)")
a(f"s_mul_i32 s{sN}, s{sN}, 1664525")
a(f"s_add_u32 s{sN}, s{sN}, 1013904223")

a.wait_vm("kv")
stamp("kv loaded")
unpack(64, 36, 2)
for r in range(8):
    a(f"v_mul_f32 v{68 + r}, v{16 + r + 3}, v64")
for j in range(1, 4):
    for r in range(8):
        a(f"v_fmac_f32 v{68 + r}, v{16 + r + 3 - j}, v{64 + j}")
for r in range(8):
    a(f"v_mul_f32 v{68 + r}, v{68 + r}, v{27 + r}")
for i in range(4):
    a(f"v_cvt_pk_bf16_f32 v{76 + i}, v{68 + 7 - 2 * i}, v{68 + 6 - 2 * i}")
a(f"s_mov_b32 s{sT0}, {hex(WS_KVB)}")
a(f"buffer_store_dwordx4 v[76:79], v8, {srd('WS')}, s{sT0} offen sc1", "kvst")

a.wait_vm("K")
for i in range(6):
    a(f"v_alignbit_b32 v{16 + i}, v{41 + i}, v{40 + i}, 16")
for i in range(6):
    a(f"v_alignbit_b32 v{22 + i}, v{42 + i}, v{41 + i}, 16")
for i in range(6):
    a(f"v_mov_b32 v{28 + i}, v{41 + i}")
a("v_and_b32 v2, 255, v0")
a("v_lshlrev_b32 v2, 4, v2")
a("v_lshrrev_b32 v3, 8, v0")
a(f"v_mul_u32_u24 v3, {8 * KC_STRIDE}, v3")
a("v_add_u32 v2, v2, v3")
win = {1: 16, 2: 28, 3: 22, 4: 42, 5: 18, 6: 30, 7: 24, 8: 44}
for sh in range(1, 9):
    b = win[sh]
    a(f"ds_write_b128 v2, v[{b}:{b + 3}] offset:{L_KC + (sh - 1) * KC_STRIDE + 16}")
a.wait_vm("kvst")
stamp("kv drained")
a("s_barrier")
sk = only_wave("eq", 0, "sig0")
signal(WS_F0, sWL)
a(f"{sk}:")
a.vm = []

LOG2E = 1.4426950408889634
for i in (60, 61):
    a(f"v_mul_f32 v{i + 2}, {-LOG2E}, v{i}")
for i in (60, 61):
    a(f"v_exp_f32 v{i + 2}, v{i + 2}")
for i in (60, 61):
    a(f"v_add_f32 v{i + 2}, 1.0, v{i + 2}")
for i in (60, 61):
    a(f"v_rcp_f32 v{i + 2}, v{i + 2}")
for i in (60, 61):
    a(f"v_mul_f32 v{i}, v{i}, v{i + 2}")
a("v_cvt_pk_bf16_f32 v62, v60, v61")
unpack(60, 62, 1)
unpack(64, 52, 4)
unpack(72, 56, 4)
for e in range(8):
    a(f"v_mul_f32 v{64 + e}, v{64 + e}, v60")
for e in range(8):
    a(f"v_fmac_f32 v{64 + e}, v{72 + e}, v61")
for e in range(4):
    a(f"v_permlane32_swap_b32 v{64 + e}, v{68 + e}")
for e in range(4):
    a(f"v_add_f32 v{64 + e}, v{64 + e}, v{68 + e}")
for e in range(2):
    a(f"v_permlane16_swap_b32 v{64 + e}, v{66 + e}")
for e in range(2):
    a(f"v_add_f32 v{64 + e}, v{64 + e}, v{66 + e}")
for e in range(2):
    a(f"v_add_f32_dpp v{64 + e}, v{64 + e}, v{64 + e} row_ror:8 row_mask:0xf bank_mask:0xf")
a(f"v_and_b32 v2, 7, v{vLANE}")
a("v_lshlrev_b32 v2, 5, v2")
a(f"v_lshrrev_b32 v3, 4, v{vLANE}")
a("v_lshl_add_u32 v2, v3, 3, v2")
a(f"s_lshl_b32 s{sT0}, s{sWAVE}, 8")
a(f"s_add_u32 s{sT0}, s{sT0}, {L_MISC}")
a(f"v_add_u32 v2, s{sT0}, v2")
a("ds_write_b64 v2, v[64:65]")

unpack(vQ, 48, 4)
a(f"v_add_f32 v64, v{vQ}, v{vQ + 1}")
for e in range(2, 8):
    a(f"v_add_f32 v64, v64, v{vQ + e}")
wave_sum([64], [65])
a(f"v_mul_f32 v64, {-1.0 / 512}, v64")
for e in range(8):
    a(f"v_add_f32 v{vG + e}, v{vQ + e}, v64")
a(f"v_mul_f32 v64, v{vG}, v{vG}")
for e in range(1, 8):
    a(f"v_fmac_f32 v64, v{vG + e}, v{vG + e}")
wave_sum([64], [65])
a("v_mov_b32 v65, 0x3727c5ac")
a(f"v_fmac_f32 v65, {1.0 / 512}, v64")
a("v_rsq_f32 v65, v65")
for e in range(8):
    a(f"v_mul_f32 v{vG + e}, v{vG + e}, v65")

a("s_waitcnt lgkmcnt(0)")
a("s_barrier")
sk = only_wave("eq", 1, "modp")
a(f"s_cmp_lt_u32 s{sJ}, 24")
a(f"s_cbranch_scc0 {sk}")
a(f"v_lshlrev_b32 v4, 2, v{vLANE}")
a(f"v_add_u32 v2, {L_MISC}, v4")
for w in range(8):
    a(f"ds_read_b32 v{64 + w}, v2 offset:{w * 256}")
a(f"s_and_b32 s{sT0}, s{sJ}, 3")
a(f"s_mul_i32 s{sT0}, s{sT0}, 12288")
a(f"s_lshr_b32 s{sT1}, s{sJ}, 2")
a(f"s_lshl_b32 s{sT1}, s{sT1}, 11")
a(f"s_add_u32 s{sT0}, s{sT0}, s{sT1}")
a(f"s_lshl_b32 s{sT1}, s{sXCD}, 8")
a(f"s_add_u32 s{sT0}, s{sT0}, s{sT1}")
a(f"s_add_u32 s{sT0}, s{sT0}, {hex(WS_MODP)}")
a("s_waitcnt lgkmcnt(0)")
for w in range(1, 8):
    a(f"v_add_f32 v64, v64, v{64 + w}")
a(f"buffer_store_dword v64, v4, {srd('WS')}, s{sT0} offen sc1")
a("s_waitcnt vmcnt(0)")
signal(WS_FM, sWL)
a(f"{sk}:")
a.vm, a.lg = [], []

sk = only_wave("eq", 0, "h0")
a(f"v_and_b32 v4, 31, v{vLANE}")
a("v_lshlrev_b32 v4, 7, v4")
a(f"s_lshl_b32 s{sT1}, s{sXCD}, 12")
a(f"s_add_u32 s{sT1}, s{sT1}, {hex(WS_F0)}")
poll(4, f"s{sT1}")
a(f"{sk}:")
a("s_barrier")
stamp("H0 seen")
a("v_lshrrev_b32 v2, 1, v0")
a("v_and_b32 v3, 1, v0")
a("v_lshlrev_b32 v4, 10, v2")
a("v_lshl_add_u32 v4, v3, 4, v4")
a(f"s_lshl_b32 s{sT0}, s{sXCD}, 18")
a(f"s_lshl_b32 s{sT1}, s{sJ}, 5")
a(f"s_add_u32 s{sT0}, s{sT0}, s{sT1}")
a(f"s_add_u32 s{sT0}, s{sT0}, {hex(WS_KVB)}")
a(f"buffer_load_dwordx4 v[16:19], v4, {srd('WS')}, s{sT0} offen sc1", "u")
a(f"v_mul_u32_u24 v5, {U_STRIDE}, v3")
a("v_lshl_add_u32 v5, v2, 4, v5")
a(f"v_add_u32 v5, {L_U + 512}, v5")
a("s_waitcnt vmcnt(0)")
a("ds_write_b128 v5, v[16:19]")
a("s_waitcnt lgkmcnt(0)")
a("s_barrier")
stamp("u in LDS")

ACC = 8
notconv = only_wave("lt", 4, "conv")
a(f"v_and_b32 v2, 15, v{vLANE}")
a(f"v_lshrrev_b32 v3, 4, v{vLANE}")
a("v_and_b32 v4, 7, v2")
a(f"v_mul_u32_u24 v4, {KC_STRIDE}, v4")
a("v_lshrrev_b32 v5, 3, v2")
a("v_add_u32 v5, v5, v3")
a("v_lshl_add_u32 v4, v5, 4, v4")
a(f"s_lshr_b32 s{sT0}, s{sWAVE}, 1")
a(f"s_and_b32 s{sT1}, s{sWAVE}, 1")
a(f"s_mul_i32 s{sT2}, s{sT0}, {8 * KC_STRIDE}")
a(f"s_lshl_b32 s{sT1}, s{sT1}, 8")
a(f"s_add_u32 s{sT2}, s{sT2}, s{sT1}")
a(f"v_add_u32 v4, s{sT2}, v4")
a("v_lshlrev_b32 v5, 1, v2")
a("v_sub_u32 v5, v5, v3")
a("v_lshlrev_b32 v5, 4, v5")
a(f"s_mul_i32 s{sT2}, s{sT0}, {U_STRIDE}")
a(f"s_add_u32 s{sT2}, s{sT2}, {L_U + 512 + 16 - 192}")
a(f"s_sub_u32 s{sT2}, s{sT2}, s{sT1}")
a(f"v_add_u32 v5, s{sT2}, v5")


def conv_body():
    seq = []
    for res in range(4):
        ms = range(7, -1, -1) if res % 2 == 0 else range(8)
        for m in ms:
            for x in range(8 - m):
                seq.append((res, m, x))
    slots = [40 + 4 * i for i in range(12)]
    last = {}
    order = []
    for i, (res, m, x) in enumerate(seq):
        for key in (("B", res, x), ("A", res, m)):
            if key not in last:
                order.append(key)
            last[key] = i
    where = {}
    free = list(slots)
    nxt = 0
    started = set()

    def issue():
        nonlocal nxt
        while nxt < len(order) and free and len(a.lg) < 12:
            key = order[nxt]
            r = free.pop(0)
            where[key] = r
            kind, res, idx = key
            if kind == "A":
                a(f"ds_read_b128 v[{r}:{r + 3}], v4 offset:{L_KC + 512 * idx + 64 * res}", key)
            else:
                a(f"ds_read_b128 v[{r}:{r + 3}], v5 offset:{512 * idx + 64 * (3 - res)}", key)
            nxt += 1

    for i, (res, m, x) in enumerate(seq):
        issue()
        ka, kb = ("A", res, m), ("B", res, x)
        assert ka in where and kb in where
        a.wait_lg([ka, kb])
        j = m + x
        acc = vr(ACC + 4 * j, 4)
        c = acc if j in started else "0"
        started.add(j)
        a(f"v_mfma_f32_16x16x32_bf16 {acc}, {vr(where[ka], 4)}, {vr(where[kb], 4)}, {c}")
        for key in (ka, kb):
            if last[key] == i:
                free.append(where[key])


conv_body()
stamp("conv done")
conv_join = a.label("convj")
a(f"s_branch {conv_join}")
a(f"{notconv}:")
a(f"s_cmp_eq_u32 s{sWAVE}, 7")
a(f"s_cbranch_scc0 {conv_join}")
a(f"s_cmp_eq_u32 s{sJ}, 31")
a(f"s_cbranch_scc0 {conv_join}")
a(f"v_min_u32 v4, 23, v{vLANE}")
a("v_lshlrev_b32 v4, 7, v4")
a(f"s_lshl_b32 s{sT1}, s{sXCD}, 12")
a(f"s_add_u32 s{sT1}, s{sT1}, {hex(WS_FM)}")
poll(4, f"s{sT1}")
a(f"v_lshlrev_b32 v4, 2, v{vLANE}")
a(f"s_lshl_b32 s{sT1}, s{sXCD}, 8")
for b in range(6):
    for sp in range(4):
        a(f"s_add_u32 s{sT0}, s{sT1}, {hex(WS_MODP + sp * 12288 + b * 2048)}")
        a(f"buffer_load_dword v{8 + 4 * b + sp}, v4, {srd('WS')}, s{sT0} offen sc1")
a("s_waitcnt vmcnt(0)")
a(f"v_lshlrev_b32 v4, 1, v{vLANE}")
a(f"s_lshl_b32 s{sT1}, s{sXCD}, 7")
for b in range(6):
    r = 8 + 4 * b
    a(f"v_add_f32 v{r}, v{r}, v{r + 1}")
    a(f"v_add_f32 v{r + 2}, v{r + 2}, v{r + 3}")
    a(f"v_add_f32 v{r}, v{r}, v{r + 2}")
    a(f"v_cvt_pk_bf16_f32 v{r}, v{r}, v{r}")
    a(f"s_add_u32 s{sT0}, s{sT1}, {hex(WS_MODF + b * 1024)}")
    a(f"buffer_store_short v{r}, v4, {srd('WS')}, s{sT0} offen sc1")
a("s_waitcnt vmcnt(0)")
signal(WS_FF, sXCD)
a(f"{conv_join}:")
a.vm, a.lg = [], []
a("s_barrier")
sk = only_wave("lt", 4, "part")
a(f"v_and_b32 v2, 15, v{vLANE}")
a(f"v_lshrrev_b32 v3, 4, v{vLANE}")
a("v_mul_u32_u24 v3, 320, v3")
a("v_lshl_add_u32 v2, v2, 4, v3")
a(f"s_mul_i32 s{sT0}, s{sWAVE}, 10240")
a(f"v_add_u32 v2, s{sT0}, v2")
for j in range(8):
    a(f"ds_write_b128 v2, {vr(ACC + 4 * j, 4)} offset:{1280 * j}")
a(f"{sk}:")
a(f"v_lshrrev_b32 v2, 2, v{vLANE}")
a(f"v_and_b32 v3, 3, v{vLANE}")
a("v_mul_u32_u24 v3, 320, v3")
a("v_lshl_add_u32 v2, v2, 4, v3")
a(f"s_mul_i32 s{sT0}, s{sWAVE}, 1280")
a(f"v_add_u32 v2, s{sT0}, v2")
a("v_xor_b32 v3, 1, v0")
a("v_lshlrev_b32 v3, 3, v3")
a(f"v_add_u32 v3, {L_U + 512}, v3")
a("s_waitcnt lgkmcnt(0)")
a("s_barrier")
for w in range(4):
    a(f"ds_read_b128 v[{40 + 4 * w}:{43 + 4 * w}], v2 offset:{10240 * w}")
a("ds_read_b64 v[56:57], v3")
a(f"ds_read_b64 v[58:59], v3 offset:{U_STRIDE}")
a(f"s_lshl_b32 s{sT0}, s{sD}, 16")
a(f"s_and_b32 s{sT1}, s{sD}, 0xffff0000")
a(f"s_lshl_b32 s{sT2}, s{sWL}, 13")
a(f"s_add_u32 s{sT2}, s{sT2}, {hex(WS_YP)}")
a("v_lshlrev_b32 v4, 4, v0")
a("s_waitcnt lgkmcnt(0)")
unpack(60, 56, 4)
for ch in range(2):
    for r in range(4):
        a(f"v_add_f32 v{40 + 8 * ch + r}, v{40 + 8 * ch + r}, v{44 + 8 * ch + r}")
for ch in range(2):
    for r in range(4):
        a(f"v_fmac_f32 v{40 + 8 * ch + r}, s{sT0 + ch}, v{63 + 4 * ch - r}")
for r in range(4):
    a(f"v_cvt_pk_bf16_f32 v{56 + r}, v{40 + r}, v{48 + r}")
a(f"buffer_store_dwordx4 v[56:59], v4, {srd('WS')}, s{sT2} offen sc1")
stamp("y stored")
a("s_waitcnt vmcnt(0)")
a("s_barrier")
sk = only_wave("eq", 0, "sig1")
signal(WS_F1, sWL)
a(f"{sk}:")
a.vm = []
stamp("y drained")

a(f"s_and_b32 s{sT0}, s{sXCD}, 3")
a(f"s_lshl_b32 s{sT0}, s{sT0}, 2")
a(f"s_and_b32 s{sT1}, s{sJ}, 3")
a(f"s_add_u32 s{sMB}, s{sT0}, s{sT1}")
a(f"s_lshr_b32 s{sT0}, s{sXCD}, 2")
a(f"s_mul_i32 s{sT0}, s{sT0}, 7")
a(f"s_lshr_b32 s{sT1}, s{sJ}, 2")
a(f"s_add_u32 s{sFB}, s{sT0}, s{sT1}")
a(f"s_lshl_b32 s{sT0}, s{sXCD}, 2")
a(f"s_lshr_b32 s{sT1}, s{sJ}, 3")
a(f"s_add_u32 s{sSB}, s{sT0}, s{sT1}")
a(f"s_and_b32 s{sDB}, s{sJ}, 7")


def load_wgu(half):
    skip = a.label("now")
    a(f"s_cmp_lt_u32 s{sJ}, 28")
    a(f"s_cbranch_scc0 {skip}")
    a(f"v_lshrrev_b32 v2, 4, v{vLANE}")
    a(f"v_bfe_u32 v3, v{vLANE}, 1, 3")
    a("v_lshlrev_b32 v4, 1, v2")
    a("v_sub_u32 v3, v3, v4")
    a("v_mul_u32_u24 v2, 3584, v2")
    a(f"v_and_b32 v4, 1, v{vLANE}")
    a("v_lshl_add_u32 v2, v4, 4, v2")
    a("v_and_b32 v4, 7, v3")
    a("v_lshl_add_u32 v4, v4, 5, v2")
    a("v_subrev_u32 v3, 1, v3")
    a("v_and_b32 v3, 7, v3")
    a("v_lshl_add_u32 v5, v3, 5, v2")
    a(f"s_mul_i32 s{sT0}, s{sWAVE}, {4 * 3584}")
    a(f"s_lshl_b32 s{sT1}, s{sFB}, 8")
    a(f"s_add_u32 s{sT0}, s{sT0}, s{sT1}")
    a(f"s_lshl_b32 s{sT2}, s{sWAVE}, 11")
    for i in range(8):
        a(f"s_add_u32 s{sT1}, s{sT0}, {(256 * half + 32 * i) * 3584}")
        a(f"s_add_u32 m0, s{sT2}, {16384 * i}")
        a(f"buffer_load_dwordx4 v4, {srd('WG')}, s{sT1} offen lds")
        a(f"s_add_u32 m0, s{sT2}, {16384 * i + 1024}")
        a(f"buffer_load_dwordx4 v5, {srd('WU')}, s{sT1} offen lds")
    a(f"v_bfe_u32 v2, v{vLANE}, 4, 1")
    a(f"v_lshrrev_b32 v3, 5, v{vLANE}")
    a(f"v_bfe_u32 v4, v{vLANE}, 2, 2")
    a("v_lshl_add_u32 v5, v4, 1, v2")
    a(f"v_add_u32 v5, s{sWAVE}, v5")
    a("v_and_b32 v5, 7, v5")
    a("v_lshlrev_b32 v5, 5, v5")
    a("v_lshl_add_u32 v5, v4, 8, v5")
    a("v_lshl_add_u32 v5, v2, 10, v5")
    a("v_lshl_add_u32 v5, v3, 12, v5")
    a(f"v_and_b32 v2, 1, v{vLANE}")
    a("v_lshl_add_u32 v5, v2, 4, v5")
    a(f"v_bfe_u32 v2, v{vLANE}, 1, 1")
    a("v_lshl_add_u32 v5, v2, 3, v5")
    a("v_add_u32 v6, 0x10000, v5")
    a("s_waitcnt vmcnt(0)")
    a("s_barrier")
    for ks in range(16):
        for b in range(2):
            off = (4 * ks + b) * 2048
            r = 64 * half + 4 * ks + 2 * b
            a(f"ds_read_b64_tr_b16 a[{r}:{r + 1}], v{5 + (off >> 16)} offset:{off & 0xffff}")
    a("s_waitcnt lgkmcnt(0)")
    a("s_barrier")
    a(f"{skip}:")
    a.vm, a.lg = [], []


load_wgu(0)
stamp("wgu half 0")

sk = only_wave("eq", 0, "hf")
a(f"v_and_b32 v4, 7, v{vLANE}")
a("v_lshlrev_b32 v4, 7, v4")
a(f"s_mov_b32 s{sT1}, {hex(WS_FF)}")
poll(4, f"s{sT1}")
a(f"{sk}:")
a("s_barrier")
a(f"v_lshlrev_b32 v4, 4, v{vLANE}")
a(f"s_mov_b32 s{sT0}, {hex(WS_MODF)}")
a(f"s_mov_b32 s{sT1}, {hex(WS_MODF + 4096)}")
for b in range(4):
    a(f"buffer_load_dwordx4 v[{8 + 4 * b}:{11 + 4 * b}], v4, {srd('WS')}, s{sT0} offen offset:{1024 * b} sc1")
a(f"buffer_load_dwordx4 v[24:27], v4, {srd('WS')}, s{sT1} offen sc1")
a("s_waitcnt vmcnt(0)")
unpack(32, 8, 4)
unpack(40, 12, 4)
unpack(48, 16, 4)
unpack(vS2, 20, 4)
unpack(vC2, 24, 4)
for base in (40, vC2):
    for e in range(8):
        a(f"v_add_f32 v{base + e}, 1.0, v{base + e}")
    for i in range(4):
        a(f"v_cvt_pk_bf16_f32 v{56 + i}, v{base + 2 * i}, v{base + 2 * i + 1}")
    unpack(base, 56, 4)
for e in range(8):
    a(f"v_fma_f32 v{vG + e}, v{vG + e}, v{40 + e}, v{32 + e}")
for e in range(8):
    a(f"v_mul_f32 v{vG + e}, v{vG + e}, v{48 + e}")
stamp("mod ready")

sk = only_wave("lt", 4, "h1")
a("v_lshlrev_b32 v4, 7, v0")
a(f"s_mov_b32 s{sT1}, {hex(WS_F1)}")
poll(4, f"s{sT1}")
a(f"{sk}:")
a("s_barrier")
stamp("H1 seen")
a("v_lshrrev_b32 v2, 1, v0")
a("v_and_b32 v3, 1, v0")
a("v_lshlrev_b32 v4, 13, v2")
a("v_lshl_add_u32 v4, v3, 4, v4")
a(f"s_lshl_b32 s{sT0}, s{sWL}, 5")
a(f"s_add_u32 s{sT0}, s{sT0}, {hex(WS_YP)}")
a(f"buffer_load_dwordx4 v[8:11], v4, {srd('WS')}, s{sT0} offen sc1")
sk = only_wave("eq", 7, "tag")
a(f"s_cmp_eq_u32 s{sWL}, 0")
a(f"s_cbranch_scc0 {sk}")
a(f"v_mov_b32 v5, s{sN}")
a("v_mov_b32 v6, 0")
a("s_mov_b64 exec, 1")
a(f"buffer_store_dword v5, v6, {srd('WS')}, 0 offen sc1")
a("s_mov_b64 exec, -1")
a(f"{sk}:")
a("v_mul_u32_u24 v5, 4160, v3")
a("v_lshl_add_u32 v5, v2, 2, v5")
a(f"s_mul_i32 s{sT0}, s{sWAVE}, 1040")
a(f"v_lshl_add_u32 v6, v{vLANE}, 4, s{sT0}")
a("s_waitcnt vmcnt(0)")
stamp("y loaded")
for r in range(4):
    a(f"ds_write_b32 v5, v{8 + r} offset:{1040 * r}")
a("s_waitcnt lgkmcnt(0)")
a("s_barrier")
a("ds_read_b128 v[8:11], v6")
a(f"s_lshl_b32 s{sT0}, s{sWL}, 3")
a(f"s_add_u32 s{sT0}, s{sT0}, s{sWAVE}")
a(f"s_lshl_b32 s{sT0}, s{sT0}, 10")
a(f"s_add_u32 s{sT1}, s{sT0}, {hex(WS_X1)}")
a(f"s_add_u32 s{sT0}, s{sT0}, {hex(WS_H2)}")
a(f"v_lshlrev_b32 v4, 4, v{vLANE}")
a("s_waitcnt lgkmcnt(0)")
unpack(16, 8, 4)
for e in range(8):
    a(f"v_fma_f32 v{16 + e}, v{16 + e}, v{vG + e}, v{vQ + e}")
a("v_add_f32 v24, v16, v17")
a("v_mul_f32 v25, v16, v16")
a("v_fmac_f32 v25, v17, v17")
for e in range(2, 8):
    a(f"v_add_f32 v24, v24, v{16 + e}")
    a(f"v_fmac_f32 v25, v{16 + e}, v{16 + e}")
for i in range(4):
    a(f"v_cvt_pk_bf16_f32 v{12 + i}, v{16 + 2 * i}, v{17 + 2 * i}")
wave_sum([24, 25], [26, 27])
a(f"v_mul_f32 v24, {1.0 / 512}, v24")
a("v_mul_f32 v26, v24, v24")
a(f"v_mul_f32 v25, {1.0 / 512}, v25")
a("v_sub_f32 v25, v25, v26")
a("v_max_f32 v25, 0, v25")
a("v_add_f32 v25, 0x3727c5ac, v25")
a("v_rsq_f32 v25, v25")
for e in range(8):
    a(f"v_sub_f32 v{16 + e}, v{16 + e}, v24")
for e in range(8):
    a(f"v_mul_f32 v{16 + e}, v{16 + e}, v25")
for e in range(8):
    a(f"v_fma_f32 v{16 + e}, v{16 + e}, v{vC2 + e}, v{vS2 + e}")
for i in range(4):
    a(f"v_cvt_pk_bf16_f32 v{8 + i}, v{16 + 2 * i}, v{17 + 2 * i}")
a(f"buffer_store_dwordx4 v[8:11], v4, {srd('WS')}, s{sT0} offen sc1")
a(f"buffer_store_dwordx4 v[12:15], v4, {srd('WS')}, s{sT1} offen sc1")
stamp("h2 stored")
a("s_waitcnt vmcnt(0)")
a("s_barrier")
sk = only_wave("eq", 0, "sig15")
signal(WS_F15, sWL)
a(f"{sk}:")
a.vm = []
stamp("h2 drained")
load_wgu(1)
stamp("wgu half 1")

nog1 = a.label("nog1")
a(f"s_cmp_lt_u32 s{sJ}, 28")
a(f"s_cbranch_scc0 {nog1}")
sk = only_wave("eq", 0, "h15")
a(f"v_and_b32 v4, 15, v{vLANE}")
a("v_lshlrev_b32 v4, 7, v4")
a(f"s_lshl_b32 s{sT1}, s{sMB}, 11")
a(f"s_add_u32 s{sT1}, s{sT1}, {hex(WS_F15)}")
poll(4, f"s{sT1}")
a(f"{sk}:")
a("s_barrier")
stamp("H1.5 seen")
a(f"v_lshlrev_b32 v4, 4, v{vLANE}")
a(f"s_lshl_b32 s{sT0}, s{sMB}, 7")
a(f"s_add_u32 s{sT0}, s{sT0}, s{sWAVE}")
a(f"s_lshl_b32 s{sT0}, s{sT0}, 10")
a(f"s_mul_i32 s{sT2}, s{sWAVE}, 1040")
for st in range(4):
    for i in range(4):
        row = 32 * st + 8 * i
        a(f"s_add_u32 s{sT1}, s{sT0}, {hex(WS_H2 + row * 1024)}")
        a(f"s_add_u32 m0, s{sT2}, {row * 1040}")
        a(f"buffer_load_dwordx4 v4, {srd('WS')}, s{sT1} offen sc1 lds", ("h2", st))
a(f"v_and_b32 v2, 31, v{vLANE}")
a("v_mul_u32_u24 v2, 1040, v2")
a(f"v_lshrrev_b32 v3, 5, v{vLANE}")
a("v_lshl_add_u32 v5, v3, 4, v2")
a(f"s_mul_i32 s{sT0}, s{sMB}, {4 * 114688}")
a(f"s_lshl_b32 s{sT1}, s{sFB}, 3")
a(f"s_add_u32 s{sT1}, s{sT1}, s{sWAVE}")
a(f"s_lshl_b32 s{sT1}, s{sT1}, 10")
a(f"s_add_u32 s{sT0}, s{sT0}, s{sT1}")
C1 = -2.0 * math.sqrt(2.0 / math.pi) * LOG2E
C2 = C1 * 0.044715
a(f"v_mov_b32 v6, {C1}")
a(f"v_mov_b32 v7, {C2}")
NB = 6
for st in range(4):
    a.wait_vm(("h2", st))
    a("s_barrier")
    for ks in range(NB):
        a(f"ds_read_b128 v[{32 + 4 * ks}:{35 + 4 * ks}], v5 offset:{32 * ks}", ks)
    for ks in range(32):
        a.wait_lg(ks)
        r = 32 + 4 * (ks % NB)
        a(f"v_mfma_f32_32x32x16_bf16 v[8:23], a[{4 * ks}:{4 * ks + 3}], v[{r}:{r + 3}], {'v[8:23]' if ks else '0'}")
        if ks + NB < 32:
            a(f"ds_read_b128 v[{r}:{r + 3}], v5 offset:{32 * (ks + NB)}", ks + NB)
    if st < 3:
        a("v_add_u32 v5, 33280, v5")
    for e in range(8):
        a(f"v_mul_f32 v{56 + e}, v{8 + e}, v{8 + e}")
    for e in range(8):
        a(f"v_fma_f32 v{56 + e}, v{56 + e}, v7, v6")
    for e in range(8):
        a(f"v_mul_f32 v{56 + e}, v{56 + e}, v{8 + e}")
    for e in range(8):
        a(f"v_exp_f32 v{56 + e}, v{56 + e}")
    for e in range(8):
        a(f"v_mul_f32 v{64 + e}, v{8 + e}, v{16 + e}")
    for e in range(8):
        a(f"v_add_f32 v{56 + e}, 1.0, v{56 + e}")
    for e in range(8):
        a(f"v_rcp_f32 v{56 + e}, v{56 + e}")
    for e in range(8):
        a(f"v_mul_f32 v{64 + e}, v{64 + e}, v{56 + e}")
    o = 72 + 4 * (st & 1)
    for i in range(4):
        a(f"v_cvt_pk_bf16_f32 v{o + i}, v{64 + 2 * i}, v{65 + 2 * i}")
    a(f"s_add_u32 s{sT1}, s{sT0}, {hex(WS_HH + st * 114688)}")
    a(f"buffer_store_dwordx4 v[{o}:{o + 3}], v4, {srd('WS')}, s{sT1} offen sc1")
    stamp(f"g1 tile {st}")
a("s_waitcnt vmcnt(0)")
a("s_barrier")
sk = only_wave("eq", 0, "sig2")
a(f"s_lshl_b32 s{sT1}, s{sMB}, 4")
a(f"s_add_u32 s{sT1}, s{sT1}, s{sFB}")
signal(WS_F2, sT1)
a(f"{sk}:")
a(f"{nog1}:")
a.vm, a.lg = [], []
stamp("hh drained")

sDT, sKQ = 99, 3
a(f"s_and_b32 s{sDT}, s{sWAVE}, 1")
a(f"s_lshr_b32 s{sKQ}, s{sWAVE}, 1")
a(f"v_lshrrev_b32 v2, 3, v{vLANE}")
a(f"v_and_b32 v3, 7, v{vLANE}")
a("v_and_b32 v4, 2, v2")
a("v_lshlrev_b32 v4, 1, v4")
a("v_xor_b32 v3, v3, v4")
a("v_lshlrev_b32 v3, 4, v3")
a("v_lshl_add_u32 v4, v2, 10, v3")
a(f"s_mul_i32 s{sT0}, s{sKQ}, 56")
a(f"s_add_u32 s{sT0}, s{sT0}, s{sDT}")
a(f"s_lshl_b32 s{sT0}, s{sT0}, 13")
a(f"s_lshl_b32 s{sT1}, s{sDB}, 7")
a(f"s_add_u32 s{sT0}, s{sT0}, s{sT1}")
a(f"s_mul_i32 s{sT2}, s{sKQ}, 28")
a(f"s_lshl_b32 s{sT3}, s{sT2}, 10")
a(f"s_add_u32 s{sT2}, s{sT2}, s{sDT}")
a(f"s_lshl_b32 s{sT2}, s{sT2}, 10")
a(f"v_bfe_u32 v2, v{vLANE}, 4, 1")
a(f"v_lshl_add_u32 v2, s{sDT}, 1, v2")
a(f"v_bfe_u32 v3, v{vLANE}, 2, 2")
a("v_and_b32 v5, 2, v3")
a("v_xor_b32 v2, v2, v5")
a("v_lshlrev_b32 v2, 5, v2")
a("v_lshl_add_u32 v2, v3, 7, v2")
a(f"v_and_b32 v3, 3, v{vLANE}")
a("v_lshl_add_u32 v2, v3, 3, v2")
a(f"v_lshrrev_b32 v3, 5, v{vLANE}")
a("v_lshl_add_u32 v2, v3, 10, v2")
a(f"v_add_u32 v5, s{sT3}, v2")
for rho in range(2):
    for i in range(14):
        a(f"s_add_u32 s{sT1}, s{sT0}, {(14 * rho + i) * 16384}")
        a(f"s_add_u32 m0, s{sT2}, {2048 * i}")
        a(f"buffer_load_dwordx4 v4, {srd('WD')}, s{sT1} offen lds")
    a("s_waitcnt vmcnt(0)")
    a("s_barrier")
    for i in range(14):
        for b in range(2):
            r = 4 * (14 * rho + i) + 2 * b
            a(f"ds_read_b64_tr_b16 a[{r}:{r + 1}], v5 offset:{2048 * i + 512 * b}")
    a("s_waitcnt lgkmcnt(0)")
    a("s_barrier")
stamp("wd ready")

sk = only_wave("eq", 0, "h2")
a(f"v_min_u32 v4, 13, v{vLANE}")
a("v_lshlrev_b32 v4, 7, v4")
a(f"s_lshr_b32 s{sT1}, s{sSB}, 1")
a(f"s_lshl_b32 s{sT1}, s{sT1}, 11")
a(f"s_add_u32 s{sT1}, s{sT1}, {hex(WS_F2)}")
poll(4, f"s{sT1}")
a(f"{sk}:")
a("s_barrier")
stamp("H2 seen")
a(f"v_lshlrev_b32 v4, 4, v{vLANE}")
a(f"s_lshl_b32 s{sT0}, s{sSB}, 1")
a(f"s_add_u32 s{sT0}, s{sT0}, s{sDT}")
a(f"s_mul_i32 s{sT0}, s{sT0}, 114688")
a(f"s_add_u32 s{sT0}, s{sT0}, s{sT3}")
a(f"s_lshl_b32 s{sT2}, s{sWAVE}, 12")
RING = 5


def hh_dma(ph):
    a(f"s_add_u32 s{sT1}, s{sT0}, {hex(WS_HH + ph * 4096)}")
    a(f"s_add_u32 m0, s{sT2}, {32768 * (ph % RING)}")
    for i in range(4):
        a(f"buffer_load_dwordx4 v4, {srd('WS')}, s{sT1} offen offset:{1024 * i} sc1 lds", ("hh", ph))


a(f"v_lshrrev_b32 v2, 5, v{vLANE}")
a(f"v_lshl_add_u32 v2, s{sWAVE}, 1, v2")
a(f"v_and_b32 v3, 16, v{vLANE}")
a("v_add_u32 v2, v2, v3")
a(f"v_and_b32 v3, 15, v{vLANE}")
a("v_mul_u32_u24 v7, 528, v3")
a("v_lshl_add_u32 v7, v2, 4, v7")
a("v_lshlrev_b32 v3, 3, v3")
a(f"s_lshl_b32 s{sT1}, s{sDB}, 7")
a(f"v_add_u32 v3, s{sT1}, v3")
a(f"s_lshl_b32 s{sT1}, s{sSB}, 16")
a("v_lshl_add_u32 v6, v2, 10, v3")
a(f"v_add_u32 v6, s{sT1}, v6")
a(f"s_mov_b32 s{sT1}, {hex(WS_MODF + 5 * 1024)}")
a(f"buffer_load_dwordx2 v[80:81], v3, {srd('WS')}, s{sT1} offen sc1", "epi")
for st in range(2):
    a(f"s_mov_b32 s{sT1}, {hex(WS_X1 + st * 32768)}")
    a(f"buffer_load_dwordx2 v[{82 + 2 * st}:{83 + 2 * st}], v6, {srd('WS')}, s{sT1} offen sc1", "epi")
for ph in range(RING):
    hh_dma(ph)
a(f"s_lshl_b32 s{sT1}, s{sKQ}, 13")
a(f"v_add_u32 v5, s{sT1}, v4")
a("v_add_u32 v72, 0x10000, v5")
a("v_add_u32 v73, 0x20000, v5")
for ph in range(7):
    a.wait_vm(("hh", ph))
    a("s_barrier")
    if 1 <= ph and ph - 1 + RING < 7:
        hh_dma(ph - 1 + RING)
    off = 32768 * (ph % RING)
    va = (5, 72, 73)[off >> 16]
    for i in range(4):
        for st in range(2):
            r = 40 + 4 * (2 * i + st)
            a(f"ds_read_b128 v[{r}:{r + 3}], v{va} offset:{(off & 0xffff) + 4096 * st + 1024 * i}", (i, st))
    for i in range(4):
        for st in range(2):
            a.wait_lg([(i, st)])
            r = 40 + 4 * (2 * i + st)
            ks = 4 * ph + i
            acc = vr(8 + 16 * st, 16)
            a(f"v_mfma_f32_32x32x16_bf16 {acc}, a[{4 * ks}:{4 * ks + 3}], v[{r}:{r + 3}], {acc if ks else '0'}")
stamp("g2 done")
a("s_barrier")
a(f"v_and_b32 v2, 31, v{vLANE}")
a(f"v_lshrrev_b32 v3, 5, v{vLANE}")
a("v_mul_u32_u24 v3, 528, v3")
a("v_lshl_add_u32 v2, v2, 4, v3")
a(f"s_mul_i32 s{sT0}, s{sWAVE}, 4224")
a(f"v_add_u32 v2, s{sT0}, v2")
for st in range(2):
    for q in range(4):
        a(f"ds_write_b128 v2, {vr(8 + 16 * st + 4 * q, 4)} offset:{33792 * st + 1056 * q}")
unpack(72, 80, 2)
unpack(64, 82, 4)
a("s_waitcnt lgkmcnt(0)")
a("s_barrier")
for st in range(2):
    for kq in range(4):
        r = 8 + 16 * st + 4 * kq
        a(f"ds_read_b128 v[{r}:{r + 3}], v7 offset:{33792 * st + 8448 * kq}", st)
for st in range(2):
    a.wait_lg(st)
    b = 8 + 16 * st
    for e in range(4):
        a(f"v_add_f32 v{b + e}, v{b + e}, v{b + 4 + e}")
        a(f"v_add_f32 v{b + 8 + e}, v{b + 8 + e}, v{b + 12 + e}")
    for e in range(4):
        a(f"v_add_f32 v{b + e}, v{b + e}, v{b + 8 + e}")
    for e in range(4):
        a(f"v_fma_f32 v{b + e}, v{b + e}, v{72 + e}, v{64 + 4 * st + e}")
    a(f"v_cvt_pk_bf16_f32 v{b}, v{b}, v{b + 1}")
    a(f"v_cvt_pk_bf16_f32 v{b + 1}, v{b + 2}, v{b + 3}")
    a(f"s_mov_b32 s{sT1}, {32768 * st}")
    a(f"buffer_store_dwordx2 v[{b}:{b + 1}], v6, {srd('OUT')}, s{sT1} offen sc1")
stamp("out stored")
if DIAG:
    a("s_waitcnt vmcnt(0)")
    stamp("out drained")
    a(f"s_lshl_b32 s{sT0}, s2, 3")
    a(f"s_add_u32 s{sT0}, s{sT0}, s{sWAVE}")
    a(f"s_lshl_b32 s{sT0}, s{sT0}, 8")
    a(f"s_add_u32 s{sT0}, s{sT0}, {hex(WS_PROF)}")
    a(f"v_lshlrev_b32 v4, 2, v{vLANE}")
    a(f"buffer_store_dword v{vPROF}, v4, {srd('WS')}, s{sT0} offen")
if PROBE:
    a("s_waitcnt vmcnt(0)")
    stamp("out drained")
    a("L_probe:")
    a("s_sleep 2")
    a("s_memrealtime s[4:5]")
    a("s_waitcnt lgkmcnt(0)")
    a(f"s_sub_u32 s4, s4, s{sSTAMP}")
    a("s_cmp_lt_u32 s4, 5000")
    a("s_cbranch_scc1 L_probe")
a("L_end:")
a("s_endpgm")

lines, nn = fix_hazards(a.lines)
head = open(f"cdna_kernels/{NAME}.s.ref").read().split("; Override launch")[0]
text = head + f"; @launch grid=(256,1,1) block=(512,1,1) lds={LDS_BYTES}\n"
text += f""".amdgcn_target "amdgcn-amd-amdhsa--gfx950"
.text
.globl {NAME}_kernel
.p2align 8
.type {NAME}_kernel,@function
{NAME}_kernel:
""" + "\n".join(lines) + f"""
.section .rodata,"a"
.p2align 6
.amdhsa_kernel {NAME}_kernel
  .amdhsa_next_free_vgpr 256
  .amdhsa_next_free_sgpr 102
  .amdhsa_accum_offset 128
  .amdhsa_group_segment_fixed_size 0
  .amdhsa_kernarg_size 120
  .amdhsa_user_sgpr_count 2
  .amdhsa_user_sgpr_kernarg_segment_ptr 1
  .amdhsa_system_sgpr_workgroup_id_x 1
.end_amdhsa_kernel
"""
open(OUT, "w").write(text)
if DIAG:
    open(OUT[:-2] + ".stamps", "w").write("\n".join(stamp_names))
print(f"{len(lines)} lines, {nn} nops inserted -> {OUT}")
```
